```python
import torch

def _softmax(x, axis=-1):
    return torch.softmax(x, dim=axis)
def _gelu(x):
    return torch.nn.functional.gelu(x, approximate="tanh")
def _silu(x):
    return torch.nn.functional.silu(x)
def _sigmoid(x):
    return torch.sigmoid(x)
def _layernorm(x, axis=-1, eps=1e-5):
    m = x.mean(dim=axis, keepdim=True)
    v = x.var(dim=axis, keepdim=True, unbiased=False)
    return (x - m) / torch.sqrt(v + eps)
def _scatter_add(tgt, idx, src, axis=0):
    return tgt.clone().index_add_(axis, idx, src)
def _segment_sum(src, seg, n):
    out = torch.zeros((n,) + src.shape[1:], dtype=src.dtype)
    return out.index_add_(0, seg, src)
def _pad(x, pw):
    flat = tuple(v for pair in reversed(pw) for v in pair)
    return torch.nn.functional.pad(x, flat)

kernel_name = 'gated_mix__linear_kernel_hedgehog__glu_gated_glu__prompt'

def setup_inputs():

    _w = (lambda a: (lambda t: t.to(torch.bfloat16) if t.is_floating_point() else t)(torch.as_tensor(a)))
    def _A_setup():
        B, S, D, H = 1, 2048, 1024, 32
        Dh = D // H
        return {
            "x": _w((lambda *s: torch.randn(*s, dtype=torch.bfloat16) * 0.05)(B, S, D)),
            "wqkv": _w((lambda *s: torch.randn(*s, dtype=torch.bfloat16) * 0.8)(D, 3 * D)),
            "w_phi": _w((lambda *s: torch.randn(*s, dtype=torch.bfloat16) * 0.8)(H, Dh, Dh) * (Dh ** -0.5)),
            "wo": _w((lambda *s: torch.randn(*s, dtype=torch.bfloat16) * 0.1)(D, D)),
        }
    _A_in = _A_setup()

    def _B_setup():
        B, S, D, F = 1, 2048, 1024, 3584
        return {
            "x": _w((lambda *s: torch.randn(*s, dtype=torch.bfloat16) * 0.05)(B, S, D)),
            "w_gate": _w((lambda *s: torch.randn(*s, dtype=torch.bfloat16) * 0.2)(D, F)),
            "w_up": _w((lambda *s: torch.randn(*s, dtype=torch.bfloat16) * 0.05)(D, F)),
            "w_down": _w((lambda *s: torch.randn(*s, dtype=torch.bfloat16) * 0.05)(F, D)),
        }
    _B_in = _B_setup()

    return {
        "A_x": _A_in["x"],
        "A_wqkv": _A_in["wqkv"],
        "A_w_phi": _A_in["w_phi"],
        "A_wo": _A_in["wo"],
        "B_x": _B_in["x"],
        "B_w_gate": _B_in["w_gate"],
        "B_w_up": _B_in["w_up"],
        "B_w_down": _B_in["w_down"],
        "gate_w": _w((lambda *s: torch.randn(*s, dtype=torch.bfloat16) * 0.05)(1024) * 16.0),
    }

def reference(A_x, A_wqkv, A_w_phi, A_wo, B_x, B_w_gate, B_w_up, B_w_down, gate_w):
    def _A_ref(x, wqkv, w_phi, wo):
        B, S, D = x.shape
        H = 32; Dh = D // H
        qkv = (lambda x, *d: x.permute(*d))((x @ wqkv).reshape(B, S, 3, H, Dh), 2, 0, 3, 1, 4)
        q, k, v = qkv[0], qkv[1], qkv[2]
        pq = torch.einsum("bhsd,hdf->bhsf", q, w_phi)
        pk = torch.einsum("bhsd,hdf->bhsf", k, w_phi)
        phi_q = torch.concatenate([_softmax(pq, axis=-1), _softmax(-pq, axis=-1)], axis=-1)
        phi_k = torch.concatenate([_softmax(pk, axis=-1), _softmax(-pk, axis=-1)], axis=-1)
        kv = torch.einsum("bhsf,bhsd->bhfd", phi_k, v)
        z  = torch.einsum("bhsf->bhf", phi_k)
        num = torch.einsum("bhqf,bhfd->bhqd", phi_q, kv)
        den = torch.einsum("bhqf,bhf->bhq", phi_q, z)[..., None] + 1e-6
        o = num / den
        return (lambda x, *d: x.permute(*d))(o, 0, 2, 1, 3).reshape(B, S, D) @ wo

    def _B_ref(x, w_gate, w_up, w_down):
        g = torch.einsum("bsd,df->bsf", x, w_gate)
        u = torch.einsum("bsd,df->bsf", x, w_up)
        h = _sigmoid(g) * u
        return torch.einsum("bsf,fd->bsd", h, w_down)

    x = A_x
    g = _sigmoid((x * gate_w).sum(-1, keepdims=True))
    a = _A_ref(x, A_wqkv, A_w_phi, A_wo)
    b = _B_ref(x, B_w_gate, B_w_up, B_w_down)
    return g * a + (1 - g) * b
```

```python
import re

def v(i, n=1):
    return f"v{i}" if n == 1 else f"v[{i}:{i+n-1}]"
def s(i, n=1):
    return f"s{i}" if n == 1 else f"s[{i}:{i+n-1}]"
def acc(i, n=1):
    return f"a{i}" if n == 1 else f"a[{i}:{i+n-1}]"

_REG = re.compile(r"^-?(?:abs\()?([vas])(?:(\d+)|\[(\d+):(\d+)\])\)?$")
def regs(op):
    op = op.strip()
    if op == "vcc": return {("s", 106), ("s", 107)}
    if op == "m0": return {("s", 124)}
    if op == "exec": return {("s", 126), ("s", 127)}
    m = _REG.match(op)
    if not m: return set()
    f = m.group(1)
    if m.group(2) is not None: return {(f, int(m.group(2)))}
    return {(f, i) for i in range(int(m.group(3)), int(m.group(4)) + 1)}

TRANS = ("v_exp_f32", "v_log_f32", "v_rcp_f32", "v_rsq_f32", "v_sqrt_f32", "v_sin_f32", "v_cos_f32")

def parse(line):
    t = line.split(";")[0].strip()
    if not t or t.endswith(":") or t.startswith("."): return None
    parts = t.split(None, 1)
    op = parts[0]
    rest = parts[1] if len(parts) > 1 else ""
    ops = [o.strip() for o in re.split(r",(?![^\[]*\])", rest)]
    if ops and " " in ops[-1]:
        last = ops[-1].split()
        ops[-1] = last[0]
        mods = last[1:]
    else:
        mods = []
    R = lambda i: regs(ops[i]) if i < len(ops) else set()
    allr = lambda lo: set().union(*[regs(o) for o in ops[lo:]]) if len(ops) > lo else set()
    d = dict(op=op, kind="other", wr=set(), rd=set(), mods=mods, ws=1)
    if op == "s_nop":
        d["ws"] = int(ops[0], 0) + 1
    elif op.startswith("v_mfma"):
        d.update(kind="mfma", wr=R(0), rd=R(1) | R(2) | R(3), ab=R(1) | R(2), c=R(3), passes=(8 if "32x32" in op else 4))
    elif op.startswith("v_permlane") and "swap" in op:
        d.update(kind="valu", wr=R(0) | R(1), rd=R(0) | R(1), perm=True)
    elif op.startswith("v_readfirstlane") or op.startswith("v_readlane"):
        d.update(kind="valu", wr=R(0), rd=allr(1), lane=True)
    elif op.startswith("v_cmp"):
        d.update(kind="valu", wr=R(0), rd=allr(1))
    elif op.startswith("v_"):
        wr = R(0); rd = allr(1)
        if "_co_" in op: wr |= R(1); rd = allr(2)
        if op.startswith("v_fmac") or op.startswith("v_writelane"): rd |= R(0)
        if op.startswith("v_cndmask") and len(ops) == 3: rd |= regs("vcc")
        d.update(kind="valu", wr=wr, rd=rd, trans=op.replace("_e64", "").replace("_e32", "") in TRANS, dpp=("dpp" in op or any(m.startswith("row_") or m.startswith("quad_perm") for m in mods)))
    elif op.startswith("ds_read") or op.startswith("ds_bpermute") or op.startswith("ds_swizzle") or "_rtn" in op:
        d.update(kind="mem", wr=R(0), rd=allr(1))
    elif op.startswith("ds_"):
        d.update(kind="mem", rd=allr(0))
    elif op.startswith("buffer_load") or op.startswith("global_load"):
        if "lds" in mods:
            d.update(kind="mem", rd=allr(0), ldsdma=True, vmem=True)
        else:
            d.update(kind="mem", wr=R(0), rd=allr(1), vmem=True)
    elif op.startswith("buffer_store") or op.startswith("buffer_atomic"):
        d.update(kind="mem", rd=allr(0), vmem=True, wide=(R(0) if ("x4" in op or "x3" in op) else set()))
    elif op.startswith("s_"):
        d.update(kind="salu", wr=R(0) if not op.startswith("s_cmp") and not op.startswith("s_waitcnt") else set(), rd=allr(1))
    return d

def pad_hazards(lines):
    out = []
    hist = []
    def need(cur):
        n = 0
        for p, dist in hist:
            req = 0
            vw = {r for r in p["wr"] if r[0] in "va"}
            sw = {r for r in p["wr"] if r[0] == "s"}
            if p["kind"] == "valu":
                if cur["kind"] == "mfma" and vw & cur["rd"]: req = max(req, 2)
                if cur["kind"] == "valu":
                    if cur.get("perm") and vw & cur["rd"]: req = max(req, 2)
                    if cur.get("dpp") and vw & cur["rd"]: req = max(req, 2)
                    if cur.get("lane") and vw & cur["rd"]: req = max(req, 1)
                    if p.get("trans") and not cur.get("trans") and vw & cur["rd"]: req = max(req, 1)
                    if sw & cur["rd"]: req = max(req, 4 if cur.get("lane") else 2)
                if cur.get("vmem") and sw & cur["rd"]: req = max(req, 5)
                if cur["kind"] == "salu" and sw & cur["rd"]: req = max(req, 1)
                if p.get("trans") and cur["kind"] in ("mem", "mfma") and vw & cur["rd"]: req = max(req, 2)
            elif p["kind"] == "mfma":
                big = 8 if p["passes"] == 4 else 12
                if cur["kind"] == "mfma":
                    if vw & cur["ab"]: req = max(req, big)
                    if vw & cur["c"] and cur["c"] != vw: req = max(req, big - 2)
                    if vw & cur["wr"] and cur["c"] != vw: req = max(req, big - 2)
                elif cur["kind"] in ("valu", "mem"):
                    if vw & (cur["rd"] | cur["wr"]): req = max(req, big)
                    if cur["kind"] == "valu" and p["c"] & cur["wr"]: req = max(req, 3 if p["passes"] == 4 else 7)
            elif p["kind"] == "mem":
                if p.get("wide") and p["wide"] & cur["wr"]: req = max(req, 2)
            elif p["kind"] == "salu":
                if cur.get("ldsdma") and ("s", 124) in p["wr"]: req = max(req, 1)
            n = max(n, req - dist)
        return n
    for l in lines:
        cur = parse(l)
        if cur is None:
            out.append(l); continue
        n = need(cur)
        if n > 0:
            out.append(f"    s_nop {n-1}")
            hist = [(p, d + n) for p, d in hist]
        out.append(l)
        hist = [(p, d + cur["ws"]) for p, d in hist if d + cur["ws"] < 14]
        hist.append((cur, 0))
    return out

class Asm:
    def __init__(self):
        self.L = []
    def __call__(self, s):
        for line in s.split("\n"):
            line = line.strip()
            if line:
                self.L.append(("" if line.endswith(":") else "    ") + line)
    def c(self, s):
        self.L.append("    ; " + s)
    def text(self):
        return "\n".join(pad_hazards(self.L)) + "\n"

def kernel_header(a, name):
    a.L.append(f".globl {name}")
    a.L.append(".p2align 8")
    a.L.append(f".type {name},@function")
    a.L.append(f"{name}:")

def kernel_desc(a, name, nvgpr, nsgpr, accum):
    a.L.append('.section .rodata,"a"')
    a.L.append(".p2align 6")
    a.L.append(f".amdhsa_kernel {name}")
    a.L.append(f"  .amdhsa_next_free_vgpr {nvgpr}")
    a.L.append(f"  .amdhsa_next_free_sgpr {nsgpr}")
    a.L.append(f"  .amdhsa_accum_offset {accum}")
    a.L.append("  .amdhsa_group_segment_fixed_size 0")
    a.L.append("  .amdhsa_kernarg_size 96")
    a.L.append("  .amdhsa_user_sgpr_count 2")
    a.L.append("  .amdhsa_user_sgpr_kernarg_segment_ptr 1")
    a.L.append("  .amdhsa_system_sgpr_workgroup_id_x 1")
    a.L.append(".end_amdhsa_kernel")
    a.L.append(".text")
```

```python
import sys
from asmlib import *

K1 = "gm_stage1_kernel"
K2 = "gm_stage2_kernel"

XRING = 0
WRING = 65536
WSLOT = 20480
PHI_LDS = WRING + 4 * WSLOT
K1_LDS = PHI_LDS + 2048 + 256

vTID, vLANE = 0, 1
vXA = [2, 3]
vG = [4, 5]
vQ = [[6, 7], [8, 9]]
vXD = 10
vWD = [11, 12, 13]
XF = 16
WF = 48
ACC = 80
TMP = 240
def xf(set_, tt): return XF + 16 * set_ + 4 * tt
def wf(i): return WF + 4 * (i % 8)
def accr(j, tt): return ACC + 16 * j + 4 * tt

sX, sWQKV, sWPHI, sGW, sWG, sWU, sDBG, sWS = 4, 6, 8, 10, 12, 14, 16, 18
sWAVE, sHF, sTG, sMI, sNI = 20, 21, 22, 23, 24
srdX, srdW, srdWS, srdM = 28, [32, 36, 40], 44, 48
sWOFF, sWINC, sWLDS, sXOFF, sXLDS, sCNT = 52, 53, 54, 55, 56, 57
sT = 60

def tiles_of(hf):
    if hf == 0:
        return [("q", 0), ("q", 1), ("k", 0), ("k", 1), ("v", 0), ("v", 1), ("g", 0), ("g", 1), ("u", 0), ("u", 1)]
    return [("g", j) for j in range(2, 7)] + [("u", j) for j in range(2, 7)]

def w_read(tile, slot, t, dst):
    kind, jj = tile
    rh, sl = slot >> 1, slot & 1
    if kind in "qkv":
        m = "qkv".index(kind)
        return f"ds_read_b64_tr_b16 {v(dst + 2 * t, 2)}, {v(vQ[jj][rh])} offset:{sl * WSLOT + 64 * m + 1536 * t}"
    off = sl * WSLOT + 6144 + (7168 if kind == "u" else 0) + 1792 * t + 32 * jj
    return f"ds_read_b64_tr_b16 {v(dst + 2 * t, 2)}, {v(vG[rh])} offset:{off}"

def x_read(xslot, kk, tt, set_):
    return f"ds_read_b128 {v(xf(set_, tt), 4)}, {v(vXA[kk])} offset:{xslot * 32768 + tt * 2048}"

def w_dma(hf, slot):
    n = 3 if hf == 0 else 2
    out = []
    for i in range(n):
        out.append([f"s_add_u32 m0, {s(sWLDS)}, {slot * WSLOT + i * 1024}",
                    f"buffer_load_dwordx4 {v(vWD[i])}, {s(srdW[i], 4)}, {s(sWOFF)} offen lds"])
    out[-1].append(f"s_add_u32 {s(sWOFF)}, {s(sWOFF)}, {s(sWINC)}")
    return out

def x_dma(hf, xslot):
    n = 3 if hf == 0 else 5
    out = []
    for i in range(n):
        out.append([f"s_add_u32 m0, {s(sXLDS)}, {xslot * 32768 + i * 1024}",
                    f"s_add_u32 {s(sT)}, {s(sXOFF)}, {i * 16384}",
                    f"buffer_load_dwordx4 {v(vXD)}, {s(srdX, 4)}, {s(sT)} offen lds"])
    out[-1].append(f"s_add_u32 {s(sXOFF)}, {s(sXOFF)}, 128")
    return out

class LgkmTracker:
    def __init__(self, a):
        self.a = a
        self.q = []
    def issue(self, key, text):
        self.a(text)
        self.q.append(key)
    def need(self, keys):
        idx = max([i for i, k in enumerate(self.q) if k in keys], default=-1)
        if idx >= 0:
            n = len(self.q) - 1 - idx
            n = min(n, 15)
            self.a(f"s_waitcnt lgkmcnt({n})")
            self.q = self.q[len(self.q) - n:] if n else []
    def drain(self):
        self.q = []

def tail_reads(hf, nxt):
    tl = tiles_of(hf)
    slot = nxt % 4
    r = []
    def W(j):
        for t in range(2):
            r.append((("W", (10 * nxt + j) % 40), w_read(tl[j], slot, t, wf(10 * nxt + j))))
    W(0)
    if nxt % 2 == 0:
        for tt in range(4):
            r.append((("X", nxt % 2, tt), x_read((nxt >> 1) & 1, 0, tt, 0)))
    for j in range(1, 5):
        W(j)
    return r

def main_loop(a, hf, opt):
    tl = tiles_of(hf)
    lab = f"L1_loop{hf}"
    trk = LgkmTracker(a)
    for key, txt in tail_reads(hf, 0):
        trk.issue(key, txt)
    a(f"s_mov_b32 {s(sCNT)}, 8")
    a(".p2align 6")
    a(f"{lab}:")
    for u in range(4):
        fill = {g: [] for g in range(10)}
        for j in range(5):
            for t in range(2):
                fill[j].append(("lds", ("W", (10 * u + j + 5) % 40), w_read(tl[j + 5], u, t, wf(10 * u + j + 5))))
        if u % 2 == 0:
            for tt in range(4):
                fill[tt].append(("lds", ("X", 1, tt), x_read((u >> 1) & 1, 1, tt, 1)))
        dm = w_dma(hf, (u + 3) % 4)
        if u % 2 == 1:
            dm = x_dma(hf, ((u - 1) >> 1) & 1) + dm
        if opt.get("nodma"): dm = []
        for i, d in enumerate(dm):
            fill[(i * 6) // len(dm) if len(dm) > 3 else (2 * i + 1)].append(("raw", d))
        tr = tail_reads(hf, (u + 1) % 4)
        per = (len(tr) + 2) // 3
        for i, (key, txt) in enumerate(tr):
            fill[7 + min(i // per, 2)].append(("lds", key, txt))
        for g in range(10):
            f = list(fill[g])
            order = range(4) if g % 2 == 0 else range(3, -1, -1)
            for n, tt in enumerate(order):
                trk.need({("W", (10 * u + g) % 40), ("X", u % 2, tt)})
                A, B = v(wf(10 * u + g), 4), v(xf(u % 2, tt), 4)
                if tl[g][0] == "v":
                    A, B = B, A
                c = v(accr(g, tt), 4)
                a(f"v_mfma_f32_16x16x32_bf16 {c}, {A}, {B}, {c}")
                k = (len(f) + (3 - n)) // (4 - n)
                for _ in range(k):
                    e = f.pop(0)
                    if e[0] == "lds":
                        trk.issue(e[1], e[2])
                    else:
                        for t_ in e[1]:
                            a(t_)
            if g == 6:
                a("s_waitcnt lgkmcnt(0)" if opt.get("novm") else "s_waitcnt vmcnt(9) lgkmcnt(0)")
                trk.drain()
                if not opt.get("nobar") and not (opt.get("halfbar") and u % 2 == 0):
                    a("s_barrier")
        if u == 3 and opt.get("iters"):
            a("s_memrealtime s[96:97]")
            a("s_waitcnt lgkmcnt(0)")
            a(f"s_mov_b32 m0, {s(sCNT)}")
            a(f"v_writelane_b32 v255, s96, m0")
        if u == 3:
            a(f"s_sub_u32 {s(sCNT)}, {s(sCNT)}, 1")
            a(f"s_cmp_eq_u32 {s(sCNT)}, 1")
            a(f"s_cselect_b32 {s(sXOFF)}, 0x40000000, {s(sXOFF)}")
            a(f"s_cmp_lg_u32 {s(sCNT)}, 0")
            a(f"s_cbranch_scc1 {lab}")

def k1_setup(a, opt):
    a(f"s_cmp_ge_u32 s2, 256")
    a(f"s_cbranch_scc1 L1_end")
    a(f"s_load_dwordx4 {s(sX, 4)}, s[0:1], 0")
    a(f"s_load_dwordx2 {s(sWPHI, 2)}, s[0:1], 16")
    a(f"s_load_dwordx4 {s(sWG, 4)}, s[0:1], 40")
    a(f"s_load_dwordx2 {s(sGW, 2)}, s[0:1], 64")
    a(f"s_load_dwordx4 {s(sDBG, 4)}, s[0:1], 80")
    a(f"v_lshrrev_b32 v14, 6, v0")
    a(f"v_and_b32 {v(vLANE)}, 63, v0")
    a(f"v_readfirstlane_b32 {s(sWAVE)}, v14")
    a(f"s_and_b32 {s(sT)}, s2, 7")
    a(f"s_lshr_b32 {s(sT+1)}, s2, 3")
    a(f"s_lshl_b32 {s(sNI)}, {s(sT)}, 2")
    a(f"s_and_b32 {s(sT+2)}, {s(sT+1)}, 3")
    a(f"s_add_u32 {s(sNI)}, {s(sNI)}, {s(sT+2)}")
    a(f"s_lshr_b32 {s(sMI)}, {s(sT+1)}, 2")
    if opt.get("same"):
        a(f"s_mov_b32 {s(sNI)}, 1")
        a(f"s_mov_b32 {s(sMI)}, 0")
    a(f"s_lshr_b32 {s(sHF)}, {s(sWAVE)}, 2")
    a(f"s_and_b32 {s(sTG)}, {s(sWAVE)}, 3")
    L = v(vLANE)
    a(f"v_lshrrev_b32 v14, 3, {L}")
    a(f"v_and_b32 v15, 6, v14")
    a(f"v_and_b32 v16, 7, {L}")
    a(f"v_xor_b32 v15, v15, v16")
    a(f"v_lshlrev_b32 v15, 4, v15")
    a(f"v_lshl_add_u32 {v(vXD)}, v14, 11, v15")
    a(f"s_mul_i32 {s(sT)}, {s(sTG)}, 3")
    a(f"s_lshl_b32 {s(sT+1)}, {s(sTG)}, 1")
    a(f"s_add_u32 {s(sT+1)}, {s(sT+1)}, 12")
    a(f"s_cmp_eq_u32 {s(sHF)}, 0")
    a(f"s_cselect_b32 {s(sT+3)}, {s(sT)}, {s(sT+1)}")
    a(f"s_lshl_b32 {s(sWLDS)}, {s(sT+3)}, 10")
    a(f"s_add_u32 {s(sWLDS)}, {s(sWLDS)}, {WRING}")
    a(f"s_mul_i32 {s(sT+1)}, {s(sTG)}, 5")
    a(f"s_add_u32 {s(sT+1)}, {s(sT+1)}, 12")
    a(f"s_cmp_eq_u32 {s(sHF)}, 0")
    a(f"s_cselect_b32 {s(sT+4)}, {s(sT)}, {s(sT+1)}")
    a(f"s_lshl_b32 {s(sXLDS)}, {s(sT+4)}, 10")
    a(f"s_lshl_b32 {s(sXOFF)}, {s(sT+4)}, 14")
    a(f"s_cmp_lt_u32 {s(sWAVE)}, 2")
    a(f"s_movk_i32 {s(sT+5)}, 4682")
    a(f"s_movk_i32 {s(sT+7)}, 7168")
    a(f"s_cselect_b32 {s(sT+5)}, 5462, {s(sT+5)}")
    a(f"s_cselect_b32 {s(sT+6)}, 12, 14")
    a(f"s_cselect_b32 {s(sT+7)}, 6144, {s(sT+7)}")
    a(f"s_cselect_b64 {s(sT+8, 2)}, -1, 0")
    a(f"s_lshl_b32 {s(sWINC)}, {s(sT+7)}, 5")
    a(f"s_mul_i32 {s(sT+10)}, {s(sNI)}, 64")
    a(f"s_mul_i32 {s(sT+11)}, {s(sNI)}, 224")
    a(f"s_mov_b32 {s(sWOFF)}, 0")
    for i in range(3):
        a(f"s_add_u32 {s(sT+12)}, {s(sT+3)}, {i}")
        a(f"s_cmp_ge_u32 {s(sT+12)}, 13")
        a(f"s_cselect_b32 {s(sT+13)}, 13, 6")
        a(f"s_cmp_lt_u32 {s(sT+12)}, 6")
        a(f"s_cselect_b32 {s(sT+13)}, 0, {s(sT+13)}")
        a(f"s_sub_u32 {s(sT+13)}, {s(sT+12)}, {s(sT+13)}")
        a(f"s_lshl_b32 {s(sT+13)}, {s(sT+13)}, 6")
        a(f"v_add_u32 v14, {s(sT+13)}, {L}")
        a(f"v_mul_u32_u24 v15, {s(sT+5)}, v14")
        a(f"v_lshrrev_b32 v15, 16, v15")
        a(f"v_mul_u32_u24 v16, {s(sT+6)}, v15")
        a(f"v_sub_u32 v16, v14, v16")
        a(f"v_and_b32 v17, 0x13, v15")
        a(f"v_and_b32 v18, 4, v15")
        a(f"v_lshl_or_b32 v17, v18, 1, v17")
        a(f"v_and_b32 v19, 8, v15")
        a(f"v_lshrrev_b32 v19, 1, v19")
        a(f"v_or_b32 v17, v17, v19")
        a(f"v_mul_u32_u24 v17, {s(sT+7)}, v17")
        a(f"v_lshrrev_b32 v18, 1, v18")
        a(f"v_and_b32 v19, 3, v16")
        a(f"v_xor_b32 v19, v19, v18")
        a(f"v_lshlrev_b32 v19, 4, v19")
        a(f"v_lshrrev_b32 v20, 2, v16")
        a(f"v_lshl_add_u32 v19, v20, 11, v19")
        a(f"v_add_u32 v19, {s(sT+10)}, v19")
        a(f"v_lshlrev_b32 v20, 4, v16")
        a(f"v_add_u32 v20, {s(sT+11)}, v20")
        a(f"v_cndmask_b32 v19, v20, v19, {s(sT+8, 2)}")
        a(f"v_add_u32 {v(vWD[i])}, v17, v19")
    if opt.get("linw"):
        a(f"s_mov_b32 {s(sWINC)}, 20480")
        a(f"s_mul_i32 {s(sT+13)}, {s(sNI)}, 163840")
        for i in range(3):
            a(f"s_add_u32 {s(sT+12)}, {s(sT+3)}, {i}")
            a(f"s_lshl_b32 {s(sT+12)}, {s(sT+12)}, 10")
            a(f"s_add_u32 {s(sT+12)}, {s(sT+12)}, {s(sT+13)}")
            a(f"v_lshlrev_b32 v14, 4, {L}")
            a(f"v_add_u32 {v(vWD[i])}, {s(sT+12)}, v14")
    a(f"v_lshrrev_b32 v14, 4, {L}")
    a(f"v_bfe_u32 v15, {L}, 2, 2")
    a(f"v_and_b32 v16, 3, {L}")
    a(f"v_lshrrev_b32 v17, 1, v14")
    a(f"v_and_b32 v18, 1, v14")
    a(f"v_lshlrev_b32 v19, 4, v17")
    a(f"v_lshl_add_u32 v19, v18, 2, v19")
    a(f"v_add_u32 v19, v19, v15")
    a(f"v_mul_u32_u24 v20, 224, v19")
    a(f"v_lshl_add_u32 v20, v16, 3, v20")
    a(f"v_add_u32 {v(vG[0])}, {WRING}, v20")
    a(f"v_add_u32 {v(vG[1])}, {WRING + 2*WSLOT}, v20")
    a(f"v_mul_u32_u24 v20, 192, v19")
    a(f"v_lshl_add_u32 v20, v16, 3, v20")
    a(f"v_lshlrev_b32 v21, 5, v18")
    a(f"v_xor_b32 v22, 32, v21")
    a(f"v_add_u32 v21, v20, v21")
    a(f"v_add_u32 v22, v20, v22")
    a(f"v_add_u32 {v(vQ[0][0])}, {WRING}, v21")
    a(f"v_add_u32 {v(vQ[0][1])}, {WRING + 2*WSLOT}, v21")
    a(f"v_add_u32 {v(vQ[1][0])}, {WRING}, v22")
    a(f"v_add_u32 {v(vQ[1][1])}, {WRING + 2*WSLOT}, v22")
    a(f"v_and_b32 v19, 15, {L}")
    a(f"v_and_b32 v20, 6, {L}")
    a(f"v_xor_b32 v20, v20, v14")
    a(f"v_lshlrev_b32 v20, 4, v20")
    a(f"v_lshl_add_u32 v20, v19, 7, v20")
    a(f"s_lshl_b32 {s(sT)}, {s(sTG)}, 13")
    a(f"v_add_u32 {v(vXA[0])}, {s(sT)}, v20")
    a(f"v_xor_b32 {v(vXA[1])}, 64, {v(vXA[0])}")
    a("s_waitcnt lgkmcnt(0)")
    a(f"s_lshl_b32 {s(sT)}, {s(sMI)}, 19")
    a(f"s_add_u32 {s(srdX)}, {s(sX)}, {s(sT)}")
    a(f"s_addc_u32 {s(srdX+1)}, {s(sX+1)}, 0")
    a(f"s_mov_b32 {s(srdX+2)}, {256*2048}")
    a(f"s_mov_b32 {s(srdX+3)}, 0x20000")
    for i in range(3):
        a(f"s_add_u32 {s(sT+12)}, {s(sT+3)}, {i}")
        a(f"s_cmp_ge_u32 {s(sT+12)}, 13")
        a(f"s_cselect_b64 {s(srdW[i], 2)}, {s(sWU, 2)}, {s(sWG, 2)}")
        a(f"s_cmp_lt_u32 {s(sT+12)}, 6")
        a(f"s_cselect_b64 {s(srdW[i], 2)}, {s(sWQKV, 2)}, {s(srdW[i], 2)}")
        a(f"s_lshl_b32 {s(srdW[i]+2)}, {s(sT+7)}, 10")
        a(f"s_mov_b32 {s(srdW[i]+3)}, 0x20000")
    a(f"s_mov_b32 {s(srdWS)}, {s(sWS)}")
    a(f"s_mov_b32 {s(srdWS+1)}, {s(sWS+1)}")
    a(f"s_mov_b32 {s(srdWS+2)}, 0x10000000")
    a(f"s_mov_b32 {s(srdWS+3)}, 0x20000")
    a(f"s_lshl_b32 {s(sT)}, {s(sNI)}, 11")
    a(f"s_add_u32 {s(srdM)}, {s(sWPHI)}, {s(sT)}")
    a(f"s_addc_u32 {s(srdM+1)}, {s(sWPHI+1)}, 0")
    a(f"s_mov_b32 {s(srdM+2)}, 2048")
    a(f"s_mov_b32 {s(srdM+3)}, 0x20000")

def k1_prologue(a, hf):
    def emit(groups):
        for g in groups:
            for t in g:
                a(t)
    emit(x_dma(hf, 0)); emit(w_dma(hf, 0))
    emit(w_dma(hf, 1))
    emit(x_dma(hf, 1)); emit(w_dma(hf, 2))
    a(f"v_lshlrev_b32 v14, 2, v0")
    a(f"s_lshl_b32 {s(sT)}, {s(sWAVE)}, 8")
    a(f"s_add_u32 m0, {s(sT)}, {PHI_LDS}")
    a("s_nop 0")
    a(f"buffer_load_dword v14, {s(srdM, 4)}, 0 offen lds")
    for i in range(160):
        a(f"v_mov_b32 {v(ACC + i)}, 0")
    a("s_waitcnt vmcnt(10)")
    a("s_barrier")

def k1_dump(a):
    a("s_nop 7")
    a(f"v_lshlrev_b32 v14, 2, {v(vLANE)}")
    a(f"s_lshl_b32 {s(sT)}, s2, 3")
    a(f"s_add_u32 {s(sT)}, {s(sT)}, {s(sWAVE)}")
    a(f"s_mul_i32 {s(sT)}, {s(sT)}, 40960")
    for i in range(160):
        if i % 16 == 0 and i:
            a(f"s_add_u32 {s(sT)}, {s(sT)}, 4096")
        a(f"buffer_store_dword {v(ACC+i)}, v14, {s(srdWS,4)}, {s(sT)} offen offset:{(i%16)*256}")
        if i % 32 == 31:
            a("s_waitcnt vmcnt(0)")


ACAT_TB = 144 * 8192
PART_KV = 0x1400000
PART_Z = 0x1700000
G_OFF = 0x1800000
E_PART = 0
E_KVF = 49152
E_CNT = PHI_LDS + 2048
LOG2E = 0x3FB8AA3B
sC, sNC, sHB, sKS = 58, 59, 26, 27

def xlane_reduce(a, op, r4, post=None):
    A, B, C, D = r4
    a(f"v_permlane16_swap_b32 {v(A)}, {v(B)}")
    a(f"v_permlane16_swap_b32 {v(C)}, {v(D)}")
    a(f"{op} {v(A)}, {v(A)}, {v(B)}")
    a(f"{op} {v(C)}, {v(C)}, {v(D)}")
    a(f"v_permlane32_swap_b32 {v(A)}, {v(C)}")
    a(f"{op} {v(A)}, {v(A)}, {v(C)}")
    if post: post(A)
    a(f"v_mov_b32 {v(C)}, {v(A)}")
    a(f"v_permlane32_swap_b32 {v(A)}, {v(C)}")
    a(f"v_mov_b32 {v(B)}, {v(A)}")
    a(f"v_mov_b32 {v(D)}, {v(C)}")
    a(f"v_permlane16_swap_b32 {v(A)}, {v(B)}")
    a(f"v_permlane16_swap_b32 {v(C)}, {v(D)}")

def interleave(*seqs):
    out = []
    seqs = [list(x) for x in seqs]
    while any(seqs):
        for x in seqs:
            if x: out.append(x.pop(0))
    return out

class Rec:
    def __init__(self): self.L = []
    def __call__(self, t): self.L.append(t)

def feature_map(a, T0, T1, PF, EM, PHI, ST):
    P = lambda tt, i: (T0 if i < 4 else T1) + 4 * tt + (i & 3)
    E = lambda tt, i: EM + 8 * tt + i
    for tt in range(4):
        for h in range(4):
            a(f"v_cvt_pk_bf16_f32 {v(EM + 4 * tt + h)}, {v(P(tt, 2 * h))}, {v(P(tt, 2 * h + 1))}")
    for tt in range(4):
        for j in range(2):
            a(f"v_mfma_f32_16x16x32_bf16 {v((T0, T1)[j] + 4 * tt, 4)}, {v(PF + 4 * j, 4)}, {v(EM + 4 * tt, 4)}, 0")
    MX = [ST + 2 * tt for tt in range(4)]
    MN = [ST + 8 + 2 * tt for tt in range(4)]
    for op3, op2, R in (("v_max3_f32", "v_max_f32", MX), ("v_min3_f32", "v_min_f32", MN)):
        for tt in range(4): a(f"{op3} {v(R[tt])}, {v(P(tt,0))}, {v(P(tt,1))}, {v(P(tt,2))}")
        for tt in range(4): a(f"{op3} {v(R[tt])}, {v(R[tt])}, {v(P(tt,3))}, {v(P(tt,4))}")
        for tt in range(4): a(f"{op3} {v(R[tt])}, {v(R[tt])}, {v(P(tt,5))}, {v(P(tt,6))}")
        for tt in range(4): a(f"{op2} {v(R[tt])}, {v(R[tt])}, {v(P(tt,7))}")
    r1, r2 = Rec(), Rec()
    xlane_reduce(r1, "v_max_f32", MX, post=lambda r: r1(f"v_mul_f32 {v(r)}, {s(sC)}, {v(r)}"))
    xlane_reduce(r2, "v_min_f32", MN, post=lambda r: r2(f"v_mul_f32 {v(r)}, {s(sC)}, {v(r)}"))
    for t_ in interleave(r1.L, r2.L): a(t_)
    for tt in range(4):
        for h in range(4):
            a(f"v_pk_fma_f32 {v(E(tt,2*h),2)}, {v(P(tt,2*h),2)}, {s(sC,2)}, {v(MN[tt],2)} op_sel_hi:[1,0,0] neg_lo:[1,0,0] neg_hi:[1,0,0]")
        for h in range(4):
            a(f"v_pk_fma_f32 {v(P(tt,2*h),2)}, {v(P(tt,2*h),2)}, {s(sC,2)}, {v(MX[tt],2)} op_sel_hi:[1,0,0] neg_lo:[0,0,1] neg_hi:[0,0,1]")
    for tt in range(4):
        for i in range(8):
            a(f"v_exp_f32 {v(P(tt,i))}, {v(P(tt,i))}")
        for i in range(8):
            a(f"v_exp_f32 {v(E(tt,i))}, {v(E(tt,i))}")
    for F, R in ((P, MX), (E, MN)):
        for tt in range(4): a(f"v_pk_add_f32 {v(R[tt],2)}, {v(F(tt,0),2)}, {v(F(tt,2),2)}")
        for tt in range(4): a(f"v_pk_add_f32 {v(R[tt],2)}, {v(R[tt],2)}, {v(F(tt,4),2)}")
        for tt in range(4): a(f"v_pk_add_f32 {v(R[tt],2)}, {v(R[tt],2)}, {v(F(tt,6),2)}")
        for tt in range(4): a(f"v_add_f32 {v(R[tt])}, {v(R[tt])}, {v(R[tt]+1)}")
    r1, r2 = Rec(), Rec()
    xlane_reduce(r1, "v_add_f32", MX, post=lambda r: r1(f"v_rcp_f32 {v(r)}, {v(r)}"))
    xlane_reduce(r2, "v_add_f32", MN, post=lambda r: r2(f"v_rcp_f32 {v(r)}, {v(r)}"))
    for t_ in interleave(r1.L, r2.L): a(t_)
    for tt in range(4):
        for F, R in ((P, MX), (E, MN)):
            for h in range(4):
                a(f"v_pk_mul_f32 {v(F(tt,2*h),2)}, {v(F(tt,2*h),2)}, {v(R[tt],2)} op_sel_hi:[1,0]")
    for tt in range(4):
        for jj, F in enumerate((P, E)):
            for h in range(4):
                a(f"v_cvt_pk_bf16_f32 {v(PHI + 8*tt + 4*jj + h)}, {v(F(tt,2*h))}, {v(F(tt,2*h+1))}")

def glu_tiles(a, tiles, ks_sgpr, vOFF, half_store=False):
    for G, U in tiles:
        for i in range(0, 16, 2):
            a(f"v_pk_mul_f32 {v(G+i,2)}, {v(G+i,2)}, {s(sC,2)} op_sel:[0,1] op_sel_hi:[1,1]")
        for i in range(16):
            a(f"v_exp_f32 {v(G+i)}, {v(G+i)}")
        for i in range(0, 16, 2):
            a(f"v_pk_add_f32 {v(G+i,2)}, {v(G+i,2)}, 1.0 op_sel_hi:[1,0]")
        for i in range(16):
            a(f"v_rcp_f32 {v(G+i)}, {v(G+i)}")
        for i in range(0, 16, 2):
            a(f"v_pk_mul_f32 {v(U+i,2)}, {v(U+i,2)}, {v(G+i,2)}")
    G0 = tiles[0][0]
    for tt in range(4):
        for n, (G, U) in enumerate(tiles):
            for h in range(2):
                a(f"v_cvt_pk_bf16_f32 {v(G0 + 4*tt + 2*n + h)}, {v(U + 4*tt + 2*h)}, {v(U + 4*tt + 2*h + 1)}")
    for tt in range(4):
        if half_store:
            a(f"buffer_store_dwordx2 {v(G0 + 4*tt, 2)}, {v(vOFF)}, {s(srdWS,4)}, {s(ks_sgpr)} offen offset:{tt*1024}")
        else:
            a(f"buffer_store_dwordx4 {v(G0 + 4*tt, 4)}, {v(vOFF)}, {s(srdWS,4)}, {s(ks_sgpr)} offen offset:{tt*1024}")

def epi_common(a):
    L = v(vLANE)
    a(f"s_mov_b32 {s(sC)}, {LOG2E}")
    a(f"s_mov_b32 {s(sNC)}, {LOG2E | 0x80000000}")
    a(f"s_lshr_b32 {s(sT)}, {s(sTG)}, 1")
    a(f"s_lshl_b32 {s(sT+1)}, {s(sMI)}, 1")
    a(f"s_add_u32 {s(sT)}, {s(sT)}, {s(sT+1)}")
    a(f"s_mul_i32 {s(sHB)}, {s(sT)}, {ACAT_TB}")
    a(f"s_and_b32 {s(sT)}, {s(sTG)}, 1")
    a(f"s_lshl_b32 {s(sT)}, {s(sT)}, 12")
    a(f"s_add_u32 {s(sHB)}, {s(sHB)}, {s(sT)}")
    a(f"v_lshlrev_b32 v2, 4, {L}")

def ks_normal(a, j):
    a(f"s_mul_i32 {s(sKS)}, {s(sNI)}, {3*8192}")
    a(f"s_add_u32 {s(sKS)}, {s(sKS)}, {(32 + j)*8192}")
    a(f"s_add_u32 {s(sKS)}, {s(sKS)}, {s(sHB)}")

def epilogue0(a, opt):
    L = v(vLANE)
    PF, IDF, ONE = 240, 248, 4
    epi_common(a)
    fst(a, opt, 10)
    a(f"v_lshrrev_b32 v3, 2, {L}")
    a(f"v_lshlrev_b32 v3, 6, v3")
    a(f"v_and_b32 v4, 3, {L}")
    a(f"v_lshl_add_u32 v3, v4, 3, v3")
    a(f"v_add_u32 v3, {PHI_LDS}, v3")
    for j in range(2):
        for t in range(2):
            a(f"ds_read_b64_tr_b16 {v(PF + 4*j + 2*t, 2)}, v3 offset:{t*1024 + 32*j}")
    a(f"v_and_b32 v4, 15, {L}")
    a(f"v_lshrrev_b32 v5, 4, {L}")
    a(f"v_lshlrev_b32 v5, 2, v5")
    a(f"v_sub_u32 v4, v4, v5")
    a(f"v_mov_b32 v6, 0x3f80")
    a(f"v_mov_b32 v7, 0x3f800000")
    for i in (0, 1, 4, 5): a(f"v_mov_b32 {v(IDF+i)}, 0")
    for h in range(2):
        a(f"v_cmp_eq_u32 vcc, {2*h}, v4")
        a(f"v_cndmask_b32 {v(IDF+2+h)}, 0, v6, vcc")
        a(f"v_cmp_eq_u32 vcc, {2*h+1}, v4")
        a(f"v_cndmask_b32 {v(IDF+2+h)}, {v(IDF+2+h)}, v7, vcc")
    for i in range(4): a(f"v_mov_b32 {v(ONE+i)}, 0x3f803f80")
    a("s_waitcnt vmcnt(0) lgkmcnt(0)")
    a("s_barrier")
    fst(a, opt, 11)
    if opt.get("prio"): a("s_setprio 2")
    Q0, Q1, K0, K1_, V0, V1, G0, G1, U0, U1 = [ACC + 16*j for j in range(10)]
    EM, PHI = 16, 48
    STAT = PHI
    feature_map(a, K0, K1_, PF, EM, PHI, STAT)
    fst(a, opt, 12)
    for Vi in (V0, V1):
        for u in range(2):
            for h in range(4):
                src = Vi + 8*u + 2*h
                a(f"v_cvt_pk_bf16_f32 {v(Vi + 8*u + h)}, {v(src)}, {v(src+1)}")
    TR = lambda tt, ph: (K0 + 16*tt + 4*ph) if tt < 2 else (EM + 16*(tt-2) + 4*ph)
    for tt in range(4):
        for jj in range(2):
            for tp in range(2):
                a(f"v_mfma_f32_16x16x32_bf16 {v(TR(tt, 2*jj+tp),4)}, {v(PHI + 8*tt + 4*jj,4)}, {v(IDF + (2 if tp == 0 else 0),4)}, 0")
    PK = lambda ph, u: PHI + 8*ph + 4*u
    for tt in range(4):
        for ph in range(4):
            for h in range(2):
                a(f"v_cvt_pk_bf16_f32 {v(PK(ph, tt>>1) + 2*(tt&1) + h)}, {v(TR(tt,ph)+2*h)}, {v(TR(tt,ph)+2*h+1)}")
    KV = lambda ph, i: (K0 + 4*(3*ph+i)) if 3*ph+i < 8 else (EM + 4*(3*ph+i-8))
    for u in range(2):
        for ph in range(4):
            for i in range(3):
                B = v(ONE,4) if i == 2 else v((V0, V1)[i] + 8*u, 4)
                C = "0" if u == 0 else v(KV(ph,i),4)
                a(f"v_mfma_f32_16x16x32_bf16 {v(KV(ph,i),4)}, {v(PK(ph,u),4)}, {B}, {C}")
    a(f"s_mul_i32 {s(sT)}, {s(sTG)}, 12288")
    a(f"v_add_u32 v3, {s(sT)}, v2")
    for ph in range(4):
        for i in range(3):
            a(f"ds_write_b128 v3, {v(KV(ph,i),4)} offset:{E_PART + (3*ph+i)*1024}")
    a("s_waitcnt lgkmcnt(0)")
    fst(a, opt, 13)
    a("s_barrier")
    fst(a, opt, 14)
    if opt.get("prio"): a("s_setprio 0")
    feature_map(a, Q0, Q1, PF, EM, PHI, STAT)
    fst(a, opt, 15)
    ks_normal(a, 0)
    glu_tiles(a, [(G0, U0), (G1, U1)], sKS, 2)
    fst(a, opt, 16)
    a("s_barrier")
    fst(a, opt, 17)
    a("s_barrier")
    fst(a, opt, 18)
    KF = K0
    for n in range(6):
        a(f"ds_read_b128 {v(KF + 4*n, 4)}, v2 offset:{E_KVF + n*1024}")
    a(f"s_lshl_b32 {s(sKS)}, {s(sNI)}, 13")
    a(f"s_add_u32 {s(sKS)}, {s(sKS)}, {s(sHB)}")
    a(f"s_mov_b32 {s(sT)}, 0x358637bd")
    a("s_waitcnt lgkmcnt(0)")
    NUM = lambda tt, i: Q0 + 16*i + 4*tt if i < 2 else V0 + 4*tt
    for jj in range(2):
        for tt in range(4):
            for i in (2, 0, 1):
                C = "0" if jj == 0 else v(NUM(tt,i),4)
                a(f"v_mfma_f32_16x16x32_bf16 {v(NUM(tt,i),4)}, {v(KF + 4*(2*i+jj),4)}, {v(PHI + 8*tt + 4*jj,4)}, {C}")
    for tt in range(4): a(f"v_add_f32 {v(NUM(tt,2))}, {s(sT)}, {v(NUM(tt,2))}")
    for tt in range(4): a(f"v_rcp_f32 {v(NUM(tt,2))}, {v(NUM(tt,2))}")
    for tt in range(4):
        for i in range(2):
            for h in range(2):
                a(f"v_pk_mul_f32 {v(NUM(tt,i)+2*h,2)}, {v(NUM(tt,i)+2*h,2)}, {v(NUM(tt,2),2)} op_sel_hi:[1,0]")
    for tt in range(4):
        for i in range(2):
            for h in range(2):
                a(f"v_cvt_pk_bf16_f32 {v(EM + 4*tt + 2*i + h)}, {v(NUM(tt,i)+2*h)}, {v(NUM(tt,i)+2*h+1)}")
    for tt in range(4):
        a(f"buffer_store_dwordx4 {v(EM + 4*tt,4)}, v2, {s(srdWS,4)}, {s(sKS)} offen offset:{tt*1024}")
    fst(a, opt, 19)

def epilogue1(a, opt):
    L = v(vLANE)
    epi_common(a)
    fst(a, opt, 10)
    Gt = [ACC + 16*j for j in range(5)]
    Ut = [ACC + 80 + 16*j for j in range(5)]
    XR, WR = 16, 32
    a(f"s_mov_b32 {s(srdM)}, {s(sGW)}")
    a(f"s_mov_b32 {s(srdM+1)}, {s(sGW+1)}")
    a(f"s_mov_b32 {s(srdM+2)}, 2048")
    a(f"s_mov_b32 {s(srdM+3)}, 0x20000")
    a(f"v_mov_b32 v3, {E_CNT}")
    a(f"v_mov_b32 v4, 0")
    a(f"ds_write_b32 v3, v4")
    a("s_waitcnt vmcnt(0) lgkmcnt(0)")
    a("s_barrier")
    fst(a, opt, 11)
    a(f"v_lshlrev_b32 v5, 6, {L}")
    a(f"v_and_b32 v6, 2047, v5")
    a(f"s_lshl_b32 {s(sT+4)}, {s(sNI)}, 3")
    a(f"s_lshl_b32 {s(sT+5)}, {s(sTG)}, 1")
    a(f"s_add_u32 {s(sT+4)}, {s(sT+4)}, {s(sT+5)}")
    a(f"s_lshl_b32 {s(sT+5)}, {s(sT+4)}, 11")
    for i in range(4):
        a(f"buffer_load_dwordx4 {v(XR+4*i,4)}, v5, {s(srdX,4)}, {s(sT+5)} offen offset:{16*i}")
    for i in range(4):
        a(f"buffer_load_dwordx4 {v(WR+4*i,4)}, v6, {s(srdM,4)}, 0 offen offset:{16*i}")
    ks_normal(a, 1)
    glu_tiles(a, [(Gt[0], Ut[0]), (Gt[1], Ut[1])], sKS, 2)
    fst(a, opt, 12)
    a(f"s_lshr_b32 {s(sKS)}, {s(sNI)}, 1")
    a(f"s_lshl_b32 {s(sKS)}, {s(sKS)}, 13")
    a(f"s_add_u32 {s(sKS)}, {s(sKS)}, {128*8192}")
    a(f"s_add_u32 {s(sKS)}, {s(sKS)}, {s(sHB)}")
    a(f"s_and_b32 {s(sT)}, {s(sNI)}, 1")
    a(f"s_lshl_b32 {s(sT)}, {s(sT)}, 3")
    a(f"s_add_u32 {s(sKS)}, {s(sKS)}, {s(sT)}")
    glu_tiles(a, [(Gt[4], Ut[4])], sKS, 2, half_store=True)
    fst(a, opt, 13)
    a("s_barrier")
    fst(a, opt, 14)
    R = 48
    a(f"s_mul_i32 {s(sT)}, {s(sTG)}, 3072")
    a(f"v_add_u32 v3, {s(sT)}, v2")
    SRC = [R + 0, R + 12, Gt[0], Gt[0] + 12]
    for w in range(4):
        for i in range(3):
            a(f"ds_read_b128 {v(SRC[w] + 4*i, 4)}, v3 offset:{E_PART + w*12288 + i*1024}")
    a(f"s_lshl_b32 {s(sT)}, {s(sNI)}, 3")
    a(f"s_add_u32 {s(sT)}, {s(sT)}, {s(sMI)}")
    a(f"s_lshl_b32 {s(sT+1)}, {s(sT)}, 13")
    a(f"s_lshl_b32 {s(sT+2)}, {s(sTG)}, 11")
    a(f"s_add_u32 {s(sT+1)}, {s(sT+1)}, {s(sT+2)}")
    a(f"s_add_u32 {s(sT+1)}, {s(sT+1)}, {PART_KV}")
    a(f"s_lshl_b32 {s(sT+2)}, {s(sT)}, 8")
    a(f"s_lshl_b32 {s(sT+3)}, {s(sTG)}, 6")
    a(f"s_add_u32 {s(sT+2)}, {s(sT+2)}, {s(sT+3)}")
    a(f"s_add_u32 {s(sT+2)}, {s(sT+2)}, {PART_Z}")
    a(f"v_and_b32 v7, 0x30, {L}")
    a(f"v_and_b32 v8, 15, {L}")
    a("s_waitcnt lgkmcnt(6)")
    for i in range(0, 12, 2): a(f"v_pk_add_f32 {v(SRC[0]+i,2)}, {v(SRC[0]+i,2)}, {v(SRC[1]+i,2)}")
    a("s_waitcnt lgkmcnt(0)")
    for i in range(0, 12, 2): a(f"v_pk_add_f32 {v(SRC[2]+i,2)}, {v(SRC[2]+i,2)}, {v(SRC[3]+i,2)}")
    for i in range(0, 12, 2): a(f"v_pk_add_f32 {v(SRC[0]+i,2)}, {v(SRC[0]+i,2)}, {v(SRC[2]+i,2)}")
    a(f"v_cmp_eq_u32 vcc, 0, v8")
    for i in range(2):
        a(f"buffer_store_dwordx4 {v(SRC[0]+4*i,4)}, v2, {s(srdWS,4)}, {s(sT+1)} offen offset:{i*1024} sc1")
    a(f"s_and_saveexec_b64 {s(sT+6,2)}, vcc")
    a(f"buffer_store_dwordx4 {v(SRC[0]+8,4)}, v7, {s(srdWS,4)}, {s(sT+2)} offen sc1")
    a(f"s_mov_b64 exec, {s(sT+6,2)}")
    a(f"s_mov_b32 {s(srdW[0])}, {s(sDBG)}")
    a(f"s_mov_b32 {s(srdW[0]+1)}, {s(sDBG+1)}")
    a(f"s_mov_b32 {s(srdW[0]+2)}, 256")
    a(f"s_mov_b32 {s(srdW[0]+3)}, 0x20000")
    a(f"v_mov_b32 v3, {E_CNT}")
    a(f"v_mov_b32 v4, 1")
    a(f"v_mov_b32 v9, 0")
    a(f"v_cmp_eq_u32 vcc, 0, {L}")
    a("s_waitcnt vmcnt(0)")
    a(f"s_and_saveexec_b64 {s(sT+6,2)}, vcc")
    a(f"ds_add_rtn_u32 v10, v3, v4")
    a("s_waitcnt lgkmcnt(0)")
    a(f"v_readfirstlane_b32 {s(sT+8)}, v10")
    a(f"s_cmp_eq_u32 {s(sT+8)}, 3")
    a("s_cbranch_scc0 L1_noflag")
    a(f"buffer_store_byte v4, v9, {s(srdW[0],4)}, {s(sT)} offen sc0 sc1")
    a("L1_noflag:")
    fst(a, opt, 15)
    a(f"s_mov_b64 exec, {s(sT+6,2)}")
    ks_normal(a, 2)
    glu_tiles(a, [(Gt[2], Ut[2]), (Gt[3], Ut[3])], sKS, 2)
    A = 72
    a(f"v_mov_b32 {v(A)}, 0")
    for i in range(16):
        a(f"v_lshlrev_b32 v64, 16, {v(XR+i)}")
        a(f"v_and_b32 v65, 0xffff0000, {v(XR+i)}")
        a(f"v_lshlrev_b32 v66, 16, {v(WR+i)}")
        a(f"v_and_b32 v67, 0xffff0000, {v(WR+i)}")
        a(f"v_pk_mul_f32 v[64:65], v[64:65], v[66:67]")
        a(f"v_cvt_pk_bf16_f32 v64, v64, v65")
        a(f"v_and_b32 v65, 0xffff0000, v64")
        a(f"v_lshlrev_b32 v64, 16, v64")
        a(f"v_add_f32 {v(A)}, {v(A)}, v65")
        a(f"v_add_f32 {v(A)}, {v(A)}, v64")
    for sh in (1, 2, 4, 8):
        a(f"v_add_f32_dpp {v(A)}, {v(A)}, {v(A)} row_ror:{sh} row_mask:0xf bank_mask:0xf")
    a(f"v_mov_b32 {v(A+1)}, {v(A)}")
    a(f"v_permlane16_swap_b32 {v(A)}, {v(A+1)}")
    a(f"v_add_f32 {v(A)}, {v(A)}, {v(A+1)}")
    a(f"v_cvt_pk_bf16_f32 {v(A)}, {v(A)}, {v(A)}")
    a(f"v_lshlrev_b32 {v(A)}, 16, {v(A)}")
    a(f"v_mul_f32 {v(A)}, {s(sNC)}, {v(A)}")
    a(f"v_exp_f32 {v(A)}, {v(A)}")
    a(f"v_add_f32 {v(A)}, 1.0, {v(A)}")
    a(f"v_rcp_f32 {v(A)}, {v(A)}")
    a(f"v_cvt_pk_bf16_f32 {v(A)}, {v(A)}, {v(A)}")
    a(f"v_lshlrev_b32 {v(A)}, 16, {v(A)}")
    a(f"v_sub_f32 {v(A+1)}, 1.0, {v(A)}")
    a(f"v_cvt_pk_bf16_f32 {v(A+1)}, {v(A+1)}, {v(A+1)}")
    a(f"v_lshlrev_b32 {v(A+1)}, 16, {v(A+1)}")
    a(f"s_lshl_b32 {s(sT+5)}, {s(sMI)}, 8")
    a(f"s_add_u32 {s(sT+4)}, {s(sT+4)}, {s(sT+5)}")
    a(f"s_lshl_b32 {s(sT+4)}, {s(sT+4)}, 3")
    a(f"s_add_u32 {s(sT+4)}, {s(sT+4)}, {G_OFF}")
    a(f"v_lshrrev_b32 v5, 5, {L}")
    a(f"v_lshlrev_b32 v5, 3, v5")
    a(f"v_and_b32 v6, 31, {L}")
    a(f"v_cmp_eq_u32 vcc, 0, v6")
    a(f"s_and_saveexec_b64 {s(sT+6,2)}, vcc")
    a(f"buffer_store_dwordx2 {v(A,2)}, v5, {s(srdWS,4)}, {s(sT+4)} offen")
    a(f"s_mov_b64 exec, {s(sT+6,2)}")
    fst(a, opt, 16)
    a(f"s_cmp_eq_u32 {s(sTG)}, 0")
    a("s_cbranch_scc0 L1_polled")
    a(f"s_lshl_b32 {s(sT+8)}, {s(sNI)}, 3")
    a(f"s_mov_b32 {s(sT+9)}, 0x400000")
    a("L1_poll:")
    a(f"buffer_load_dwordx2 v[10:11], v9, {s(srdW[0],4)}, {s(sT+8)} offen sc0 sc1")
    a("s_waitcnt vmcnt(0)")
    a(f"v_and_b32 v10, v10, v11")
    a(f"v_readfirstlane_b32 {s(sT+10)}, v10")
    a(f"s_sub_u32 {s(sT+9)}, {s(sT+9)}, 1")
    a(f"s_cbranch_scc1 L1_polled")
    a(f"s_cmp_eq_u32 {s(sT+10)}, 0x01010101")
    a("s_cbranch_scc0 L1_poll")
    a("L1_polled:")
    a("s_barrier")
    fst(a, opt, 17)
    a(f"s_lshl_b32 {s(sT+3)}, {s(sMI)}, 13")
    a(f"s_sub_u32 {s(sT+1)}, {s(sT+1)}, {s(sT+3)}")
    a(f"s_lshl_b32 {s(sT+3)}, {s(sMI)}, 8")
    a(f"s_sub_u32 {s(sT+2)}, {s(sT+2)}, {s(sT+3)}")
    D = ACC
    for m in range(8):
        for i in range(2):
            a(f"buffer_load_dwordx4 {v(D + 12*m + 4*i,4)}, v2, {s(srdWS,4)}, {s(sT+1)} offen offset:{i*1024} sc1")
        a(f"buffer_load_dwordx4 {v(D + 12*m + 8,4)}, v7, {s(srdWS,4)}, {s(sT+2)} offen offset:{m*256} sc1")
        if m < 7: a(f"s_add_u32 {s(sT+1)}, {s(sT+1)}, 8192")
    a(f"s_lshr_b32 {s(sT+3)}, {s(sTG)}, 1")
    a(f"s_lshl_b32 {s(sT+3)}, {s(sT+3)}, 10")
    a(f"s_and_b32 {s(sT+4)}, {s(sTG)}, 1")
    a(f"s_lshl_b32 {s(sT+4)}, {s(sT+4)}, 3")
    a(f"s_add_u32 {s(sT+3)}, {s(sT+3)}, {s(sT+4)}")
    a(f"v_add_u32 v3, {s(sT+3)}, v2")
    for m in range(1, 8):
        a(f"s_waitcnt vmcnt({3*(7-m)})")
        for i in range(0, 12, 2):
            a(f"v_pk_add_f32 {v(D+i,2)}, {v(D+i,2)}, {v(D+12*m+i,2)}")
    for i in range(3):
        for h in range(2):
            a(f"v_cvt_pk_bf16_f32 {v(16 + 2*i + h)}, {v(D+4*i+2*h)}, {v(D+4*i+2*h+1)}")
    for i in range(3):
        a(f"ds_write_b64 v3, {v(16+2*i,2)} offset:{E_KVF + 2*i*1024}")
    a("s_waitcnt lgkmcnt(0)")
    a("s_barrier")
    fst(a, opt, 18)
    fst(a, opt, 19)

def fst(a, opt, idx):
    if opt.get("fine"):
        a("s_memrealtime s[96:97]")
        a("s_waitcnt lgkmcnt(0)")
        a(f"v_writelane_b32 v255, s96, {idx}")

def stamp(a, idx):
    a(f"s_memtime {s(80 + 4*idx, 2)}")
    a(f"s_memrealtime {s(82 + 4*idx, 2)}")

def gen_k1(a, opt):
    kernel_header(a, K1)
    if opt.get("stamps"): stamp(a, 0)
    k1_setup(a, opt)
    a(f"s_cmp_eq_u32 {s(sHF)}, 0")
    a(f"s_cbranch_scc0 L1_half1")
    for hf in range(2):
        if hf == 1:
            a("L1_half1:")
        k1_prologue(a, hf)
        if opt.get("stamps"): stamp(a, 1); a("s_waitcnt lgkmcnt(0)")
        main_loop(a, hf, opt)
        if opt.get("stamps"): a("s_waitcnt lgkmcnt(0)"); stamp(a, 2)
        if opt.get("dump") or opt.get("noepi"):
            a("s_waitcnt vmcnt(0) lgkmcnt(0)")
        else:
            a("s_nop 7")
            (epilogue0, epilogue1)[hf](a, opt)
        if hf == 0:
            a("s_branch L1_epi")
    a("L1_epi:")
    if opt.get("dump"):
        k1_dump(a)
    if opt.get("stamps"):
        stamp(a, 3)
        a("s_waitcnt lgkmcnt(0)")
        for i in range(16):
            a(f"v_mov_b32 {v(16+i)}, {s(80+i)}")
        a(f"s_lshl_b32 {s(sT)}, s2, 3")
        a(f"s_add_u32 {s(sT)}, {s(sT)}, {s(sWAVE)}")
        a(f"s_lshl_b32 {s(sT)}, {s(sT)}, 6")
        a(f"s_add_u32 {s(sT)}, {s(sT)}, 0xF000000")
        if opt.get("iters") or opt.get("fine"):
            a("s_waitcnt vmcnt(0)")
            fst(a, opt, 20)
            a(f"v_lshlrev_b32 v14, 2, {v(vLANE)}")
            a(f"s_lshl_b32 {s(sT+4)}, {s(sT)}, 2")
            a(f"s_sub_u32 {s(sT+4)}, {s(sT+4)}, {0xF000000*4 - 0xE000000}")
            a(f"buffer_store_dword v255, v14, {s(srdWS,4)}, {s(sT+4)} offen")
        a(f"v_mov_b32 v14, 0")
        a(f"v_cmp_eq_u32 vcc, 0, {v(vLANE)}")
        a(f"s_and_saveexec_b64 {s(sT+2,2)}, vcc")
        for i in range(4):
            a(f"buffer_store_dwordx4 {v(16+4*i,4)}, v14, {s(srdWS,4)}, {s(sT)} offen offset:{16*i}")
    a("s_waitcnt vmcnt(0)")
    a("L1_end:")
    a("s_endpgm")
    kernel_desc(a, K1, 256, 102, 256)

K2_LDS = 122880
class R2:
    WO, WD, OUT, WS = 4, 6, 8, 12
    WAVE, TB, NB, IT = 16, 17, 18, 19
    srdA, srdW, srdO = 20, 24, 28
    AOFF, RA, RB, DB, STEP, PH, PINC, LDSB, ABASE = 32, 33, 34, 35, 36, 37, 38, 39, 40
    T = 44
    vA0, vA1, vWD = 2, 3, 4
    vWR = [5, 6, 7, 8]
    vG = 10
    WFR = 32
    AFR = 64

def k2_loads(st):
    R = R2
    u = st % 4
    g = []
    g.append([f"s_add_u32 {s(R.RB)}, {s(R.RA)}, {s(R.DB)}",
              f"s_add_u32 m0, {s(R.LDSB)}, {u*4096}",
              f"s_add_u32 {s(R.T)}, {s(R.RA)}, 16384",
              f"buffer_load_dwordx4 {v(R.vWD)}, {s(R.srdW,4)}, {s(R.RA)} offen lds"])
    g.append([f"s_add_u32 m0, {s(R.LDSB)}, {u*4096+1024}",
              f"s_add_u32 {s(R.T+1)}, {s(R.RB)}, 16384",
              f"buffer_load_dwordx4 {v(R.vWD)}, {s(R.srdW,4)}, {s(R.T)} offen lds"])
    g.append([f"s_add_u32 m0, {s(R.LDSB)}, {u*4096+2048}",
              f"s_add_u32 {s(R.PH)}, {s(R.PH)}, {s(R.PINC)}",
              f"buffer_load_dwordx4 {v(R.vWD)}, {s(R.srdW,4)}, {s(R.RB)} offen lds"])
    g.append([f"s_add_u32 m0, {s(R.LDSB)}, {u*4096+3072}",
              f"s_cmp_eq_u32 {s(R.PH)}, 3",
              f"s_cselect_b32 {s(R.T+2)}, 98304, {s(R.STEP)}",
              f"s_cselect_b32 {s(R.PH)}, 0, {s(R.PH)}",
              f"buffer_load_dwordx4 {v(R.vWD)}, {s(R.srdW,4)}, {s(R.T+1)} offen lds",
              f"s_add_u32 {s(R.RA)}, {s(R.RA)}, {s(R.T+2)}"])
    for tt in range(8):
        x = [f"buffer_load_dwordx4 {v(R.AFR + 32*u + 4*tt, 4)}, {v(R.vA0 if tt < 4 else R.vA1)}, {s(R.srdA,4)}, {s(R.AOFF)} offen offset:{(tt&3)*1024}"]
        if tt == 7: x.append(f"s_add_u32 {s(R.AOFF)}, {s(R.AOFF)}, 8192")
        g.append(x)
    return g

def k2_wreads(st):
    R = R2
    return [f"ds_read_b64_tr_b16 {v(R.WFR + 16*(st&1) + 4*i + 2*t, 2)}, {v(R.vWR[i])} offset:{(st%4)*4096 + 2048*t}" for i in range(4) for t in range(2)]

def k2_loop(a, name, accbase, last_it, opt):
    R = R2
    a(".p2align 6")
    a(f"{name}:")
    for u in range(4):
        if u == 1:
            a(f"s_cmp_eq_u32 {s(R.IT)}, 7")
            a(f"s_cbranch_scc0 {name}_n7")
            a(f"s_mul_i32 {s(R.RA)}, {s(R.WAVE)}, {224*4*2048}")
            a(f"s_add_u32 {s(R.RA)}, {s(R.RA)}, {96*2048}")
            a(f"s_mov_b32 {s(R.DB)}, {112*2048}")
            a(f"s_mov_b32 {s(R.STEP)}, {224*2048}")
            a(f"s_mov_b32 {s(R.PINC)}, 0")
            a(f"s_mov_b32 {s(R.PH)}, 0")
            a(f"s_mov_b64 {s(R.srdW,2)}, {s(R.WD,2)}")
            a(f"s_mov_b32 {s(R.srdW+2)}, {3584*2048}")
            a(f"s_lshl_b32 {s(R.AOFF)}, {s(R.WAVE)}, 15")
            a(f"s_add_u32 {s(R.AOFF)}, {s(R.AOFF)}, {128*8192}")
            a(f"s_add_u32 {s(R.AOFF)}, {s(R.AOFF)}, {s(R.ABASE)}")
            a(f"{name}_n7:")
            a(f"s_cmp_eq_u32 {s(R.IT)}, 8")
            a(f"s_cselect_b32 {s(R.srdW+2)}, 0, {s(R.srdW+2)}")
            a(f"s_cselect_b32 {s(R.srdA+2)}, 0, {s(R.srdA+2)}")
        a("s_waitcnt vmcnt(20) lgkmcnt(0)")
        fill = [[x] for x in k2_wreads(u + 1)]
        ld = k2_loads(u + 3)
        seq = []
        for i in range(12):
            seq.append(ld[i])
            if i < 8: seq.append(fill[i])
        n = 0
        for i in range(4):
            for k in range(8):
                tt = k if i % 2 == 0 else 7 - k
                c = acc(accbase + 16*tt + 4*i, 4)
                a(f"v_mfma_f32_16x16x32_bf16 {c}, {v(R.WFR + 16*(u&1) + 4*i, 4)}, {v(R.AFR + 32*u + 4*tt, 4)}, {c}")
                n += 1
                want = (n * len(seq)) // 28 if n < 28 else len(seq)
                done = getattr(k2_loop, "_d", 0)
                while done < min(want, len(seq)):
                    for t_ in seq[done]: a(t_)
                    done += 1
                k2_loop._d = done
        k2_loop._d = 0
    a(f"s_add_u32 {s(R.IT)}, {s(R.IT)}, 1")
    a(f"s_cmp_lt_u32 {s(R.IT)}, {last_it}")
    a(f"s_cbranch_scc1 {name}")

def gen_k2(a, opt):
    R = R2
    kernel_header(a, K2)
    if opt.get("stamps"): stamp(a, 0)
    a("s_cmp_ge_u32 s2, 256")
    a("s_cbranch_scc1 L2_end")
    a(f"s_load_dwordx2 {s(R.WO,2)}, s[0:1], 24")
    a(f"s_load_dwordx2 {s(R.WD,2)}, s[0:1], 56")
    a(f"s_load_dwordx2 {s(R.OUT,2)}, s[0:1], 72")
    a(f"s_load_dwordx2 {s(R.WS,2)}, s[0:1], 88")
    a("v_lshrrev_b32 v14, 6, v0")
    a("v_and_b32 v1, 63, v0")
    a(f"v_readfirstlane_b32 {s(R.WAVE)}, v14")
    a(f"s_lshr_b32 {s(R.T)}, s2, 3")
    a(f"s_bfe_u32 {s(R.TB)}, s2, 0x20001")
    a(f"s_lshl_b32 {s(R.TB)}, {s(R.TB)}, 2")
    a(f"s_and_b32 {s(R.T+1)}, {s(R.T)}, 3")
    a(f"s_add_u32 {s(R.TB)}, {s(R.TB)}, {s(R.T+1)}")
    a(f"s_and_b32 {s(R.NB)}, s2, 1")
    a(f"s_lshl_b32 {s(R.NB)}, {s(R.NB)}, 3")
    a(f"s_lshr_b32 {s(R.T+1)}, {s(R.T)}, 2")
    a(f"s_add_u32 {s(R.NB)}, {s(R.NB)}, {s(R.T+1)}")
    a(f"v_lshlrev_b32 {v(R.vA0)}, 4, v1")
    a(f"v_add_u32 {v(R.vA1)}, 4096, {v(R.vA0)}")
    a("v_lshrrev_b32 v14, 3, v1")
    a("v_and_b32 v15, 6, v14")
    a("v_and_b32 v16, 7, v1")
    a("v_xor_b32 v15, v15, v16")
    a("v_lshlrev_b32 v15, 4, v15")
    a("v_lshl_add_u32 v15, v14, 11, v15")
    a(f"s_lshl_b32 {s(R.T)}, {s(R.NB)}, 7")
    a(f"v_add_u32 {v(R.vWD)}, {s(R.T)}, v15")
    a(f"s_mul_i32 {s(R.ABASE)}, {s(R.TB)}, {ACAT_TB}")
    a(f"s_lshl_b32 {s(R.AOFF)}, {s(R.WAVE)}, 18")
    a(f"s_add_u32 {s(R.AOFF)}, {s(R.AOFF)}, {s(R.ABASE)}")
    a(f"s_lshl_b32 {s(R.LDSB)}, {s(R.WAVE)}, 14")
    a(f"s_mov_b32 {s(R.DB)}, 32768")
    a(f"s_mov_b32 {s(R.STEP)}, 65536")
    a(f"s_mov_b32 {s(R.RA)}, 0")
    a(f"s_mov_b32 {s(R.PH)}, 0")
    a(f"s_cmp_eq_u32 {s(R.WAVE)}, 2")
    a(f"s_cselect_b32 {s(R.RA)}, {1184*2048}, {s(R.RA)}")
    a(f"s_cselect_b32 {s(R.PH)}, 2, {s(R.PH)}")
    a(f"s_cmp_eq_u32 {s(R.WAVE)}, 3")
    a(f"s_cselect_b32 {s(R.RA)}, {2384*2048}, {s(R.RA)}")
    a(f"s_cselect_b32 {s(R.PH)}, 1, {s(R.PH)}")
    a(f"s_mov_b32 {s(R.IT)}, 0")
    a(f"s_mov_b32 {s(R.srdW+2)}, {3584*2048}")
    a(f"s_mov_b32 {s(R.srdW+3)}, 0x20000")
    a(f"s_mov_b32 {s(R.srdA+2)}, 0x2000000")
    a(f"s_mov_b32 {s(R.srdA+3)}, 0x20000")
    a(f"s_cmp_eq_u32 {s(R.WAVE)}, 0")
    a(f"s_cselect_b32 {s(R.PINC)}, 0, 1")
    a(f"s_cselect_b32 {s(R.srdW+2)}, {1024*2048}, {s(R.srdW+2)}")
    a("s_waitcnt lgkmcnt(0)")
    a(f"s_cselect_b64 {s(R.srdW,2)}, {s(R.WO,2)}, {s(R.WD,2)}")
    a(f"s_mov_b64 {s(R.srdA,2)}, {s(R.WS,2)}")
    for st in range(3):
        for g in k2_loads(st):
            for t_ in g: a(t_)
    a("v_and_b32 v14, 15, v1")
    a("v_lshlrev_b32 v14, 3, v14")
    a(f"s_lshl_b32 {s(R.T)}, {s(R.TB)}, 10")
    a(f"s_lshl_b32 {s(R.T+1)}, {s(R.WAVE)}, 8")
    a(f"s_add_u32 {s(R.T)}, {s(R.T)}, {s(R.T+1)}")
    a(f"s_add_u32 {s(R.T)}, {s(R.T)}, {G_OFF}")
    a(f"buffer_load_dwordx2 {v(R.vG,2)}, v14, {s(R.srdA,4)}, {s(R.T)} offen")
    a(f"buffer_load_dwordx2 {v(R.vG+2,2)}, v14, {s(R.srdA,4)}, {s(R.T)} offen offset:128")
    a("v_lshrrev_b32 v14, 5, v1")
    a("v_bfe_u32 v15, v1, 2, 3")
    a("v_lshlrev_b32 v16, 10, v14")
    a("v_lshl_add_u32 v16, v15, 7, v16")
    a("v_and_b32 v17, 1, v1")
    a("v_lshl_add_u32 v16, v17, 3, v16")
    a(f"v_add_u32 v16, {s(R.LDSB)}, v16")
    a("v_bfe_u32 v17, v1, 1, 1")
    a("v_and_b32 v18, 6, v15")
    a("v_or_b32 v17, v17, v18")
    for i in range(4):
        a(f"v_xor_b32 v18, {2*i}, v17")
        a(f"v_lshl_add_u32 {v(R.vWR[i])}, v18, 4, v16")
    for i in range(256):
        a(f"v_accvgpr_write_b32 a{i}, 0")
    a(f"s_mov_b64 {s(R.srdO,2)}, {s(R.OUT,2)}")
    a(f"s_mov_b32 {s(R.srdO+2)}, {2048*2048}")
    a(f"s_mov_b32 {s(R.srdO+3)}, 0x20000")
    a("s_waitcnt vmcnt(34)")
    for x in k2_wreads(0): a(x)
    if opt.get("stamps"): stamp(a, 1)
    a(f"s_cmp_eq_u32 {s(R.WAVE)}, 0")
    a("s_cbranch_scc0 L2_loopB")
    k2_loop(a, "L2_loopA", 128, 8, opt)
    k2_loop(a, "L2_loopB", 0, 9, opt)
    if opt.get("stamps"): stamp(a, 2)
    a("s_waitcnt vmcnt(0) lgkmcnt(0)")
    a("s_barrier")
    for w in range(4):
        a(f"s_cmp_eq_u32 {s(R.WAVE)}, {w}")
        a(f"s_cbranch_scc0 L2_w{w}")
        for q in range(4):
            if q == w: continue
            base = (q*3 + ((w - q - 1) & 3)) * 8192
            a(f"v_add_u32 v14, {base}, {v(R.vA0)}")
            for n in range(8):
                a(f"ds_write_b128 v14, {acc(32*q + 4*n, 4)} offset:{n*1024}")
            if w == 0:
                a(f"v_add_u32 v15, {98304 + (q-1)*8192}, {v(R.vA0)}")
                for n in range(8):
                    a(f"ds_write_b128 v15, {acc(128 + 32*q + 4*n, 4)} offset:{n*1024}")
        for n in range(32):
            a(f"v_accvgpr_read_b32 {v(64+n)}, a{32*w+n}")
        if w == 0:
            for n in range(32):
                a(f"v_accvgpr_read_b32 {v(192+n)}, a{128+n}")
        a(f"L2_w{w}:")
    a(f"s_mul_i32 {s(R.T)}, {s(R.WAVE)}, 24576")
    a(f"v_add_u32 v14, {s(R.T)}, {v(R.vA0)}")
    a(f"s_lshl_b32 {s(R.T)}, {s(R.WAVE)}, 13")
    a(f"s_add_u32 {s(R.T)}, {s(R.T)}, {98304 - 8192}")
    a(f"v_add_u32 v15, {s(R.T)}, {v(R.vA0)}")
    a("s_waitcnt lgkmcnt(0)")
    a("s_barrier")
    for sl in range(3):
        for n in range(8):
            a(f"ds_read_b128 {v(96 + 32*sl + 4*n, 4)}, v14 offset:{sl*8192 + n*1024}")
    a(f"s_cmp_eq_u32 {s(R.WAVE)}, 0")
    a("s_cbranch_scc1 L2_noa")
    for n in range(8):
        a(f"ds_read_b128 {v(192 + 4*n, 4)}, v15 offset:{n*1024}")
    a("L2_noa:")
    a("v_and_b32 v16, 15, v1")
    a("v_lshlrev_b32 v16, 11, v16")
    a("v_bfe_u32 v17, v1, 4, 1")
    a("v_lshl_add_u32 v16, v17, 5, v16")
    a("v_lshrrev_b32 v17, 5, v1")
    a("v_lshl_add_u32 v16, v17, 4, v16")
    a(f"s_lshl_b32 {s(R.T)}, {s(R.TB)}, 18")
    a(f"s_lshl_b32 {s(R.T+1)}, {s(R.WAVE)}, 16")
    a(f"s_add_u32 {s(R.T)}, {s(R.T)}, {s(R.T+1)}")
    a(f"s_lshl_b32 {s(R.T+1)}, {s(R.NB)}, 7")
    a(f"s_add_u32 {s(R.T)}, {s(R.T)}, {s(R.T+1)}")
    a(f"s_add_u32 {s(R.T+1)}, {s(R.T)}, 32768")
    a("s_waitcnt lgkmcnt(0)")
    for sl in range(3):
        for n in range(0, 32, 2):
            a(f"v_pk_add_f32 {v(64+n,2)}, {v(64+n,2)}, {v(96+32*sl+n,2)}")
    for n in range(0, 32, 2):
        h = n // 16
        a(f"v_pk_mul_f32 {v(64+n,2)}, {v(64+n,2)}, {v(R.vG+2*h,2)} op_sel:[0,1] op_sel_hi:[1,1]")
    for n in range(0, 32, 2):
        h = n // 16
        a(f"v_pk_fma_f32 {v(64+n,2)}, {v(192+n,2)}, {v(R.vG+2*h,2)}, {v(64+n,2)} op_sel_hi:[1,0,1]")
    for n in range(0, 32, 2):
        a(f"v_cvt_pk_bf16_f32 {v(96 + n//2)}, {v(64+n)}, {v(64+n+1)}")
    for h in range(2):
        for pr in range(2):
            b = 96 + 8*h + 4*pr
            a(f"v_permlane16_swap_b32 {v(b)}, {v(b+2)}")
            a(f"v_permlane16_swap_b32 {v(b+1)}, {v(b+3)}")
    for h in range(2):
        for pr in range(2):
            b = 96 + 8*h + 4*pr
            a(f"buffer_store_dwordx4 {v(b,4)}, v16, {s(R.srdO,4)}, {s(R.T+h)} offen offset:{64*pr}")
    if opt.get("stamps"):
        a("s_waitcnt vmcnt(0)")
        stamp(a, 3)
        a("s_waitcnt lgkmcnt(0)")
        for i in range(16):
            a(f"v_mov_b32 {v(16+i)}, {s(80+i)}")
        a(f"s_mov_b32 {s(R.srdA+2)}, 0x10000000")
        a(f"s_lshl_b32 {s(R.T)}, s2, 2")
        a(f"s_add_u32 {s(R.T)}, {s(R.T)}, {s(R.WAVE)}")
        a(f"s_lshl_b32 {s(R.T)}, {s(R.T)}, 6")
        a(f"s_add_u32 {s(R.T)}, {s(R.T)}, 0xF100000")
        a(f"v_mov_b32 v14, 0")
        a(f"v_cmp_eq_u32 vcc, 0, v1")
        a(f"s_and_saveexec_b64 {s(R.T+2,2)}, vcc")
        for i in range(4):
            a(f"buffer_store_dwordx4 {v(16+4*i,4)}, v14, {s(R.srdA,4)}, {s(R.T)} offen offset:{16*i}")
    a("L2_end:")
    a("s_endpgm")
    kernel_desc(a, K2, 512, 102, 256)

def build(opt):
    a = Asm()
    a.L.append(f"; @launch kernel={K1} grid=(256,1,1) block=(512,1,1) lds={K1_LDS}")
    if not opt.get("k1only"):
        a.L.append(f"; @launch kernel={K2} grid=(256,1,1) block=(256,1,1) lds={K2_LDS}")
    a.L.append('.amdgcn_target "amdgcn-amd-amdhsa--gfx950"')
    a.L.append(".text")
    gen_k1(a, opt)
    if not opt.get("k1only"):
        gen_k2(a, opt)
    return a.text()

if __name__ == "__main__":
    opt = dict(x.split("=") if "=" in x else (x, 1) for x in sys.argv[2:])
    open(sys.argv[1], "w").write(build(opt))
```

```python
import re

def v(i, n=1):
    return f"v{i}" if n == 1 else f"v[{i}:{i+n-1}]"
def s(i, n=1):
    return f"s{i}" if n == 1 else f"s[{i}:{i+n-1}]"
def acc(i, n=1):
    return f"a{i}" if n == 1 else f"a[{i}:{i+n-1}]"

_REG = re.compile(r"^-?(?:abs\()?([vas])(?:(\d+)|\[(\d+):(\d+)\])\)?$")
def regs(op):
    op = op.strip()
    if op == "vcc": return {("s", 106), ("s", 107)}
    if op == "m0": return {("s", 124)}
    if op == "exec": return {("s", 126), ("s", 127)}
    m = _REG.match(op)
    if not m: return set()
    f = m.group(1)
    if m.group(2) is not None: return {(f, int(m.group(2)))}
    return {(f, i) for i in range(int(m.group(3)), int(m.group(4)) + 1)}

TRANS = ("v_exp_f32", "v_log_f32", "v_rcp_f32", "v_rsq_f32", "v_sqrt_f32", "v_sin_f32", "v_cos_f32")

def parse(line):
    t = line.split(";")[0].strip()
    if not t or t.endswith(":") or t.startswith("."): return None
    parts = t.split(None, 1)
    op = parts[0]
    rest = parts[1] if len(parts) > 1 else ""
    ops = [o.strip() for o in re.split(r",(?![^\[]*\])", rest)]
    if ops and " " in ops[-1]:
        last = ops[-1].split()
        ops[-1] = last[0]
        mods = last[1:]
    else:
        mods = []
    R = lambda i: regs(ops[i]) if i < len(ops) else set()
    allr = lambda lo: set().union(*[regs(o) for o in ops[lo:]]) if len(ops) > lo else set()
    d = dict(op=op, kind="other", wr=set(), rd=set(), mods=mods, ws=1)
    if op == "s_nop":
        d["ws"] = int(ops[0], 0) + 1
    elif op.startswith("v_mfma"):
        d.update(kind="mfma", wr=R(0), rd=R(1) | R(2) | R(3), ab=R(1) | R(2), c=R(3), passes=(8 if "32x32" in op else 4))
    elif op.startswith("v_permlane") and "swap" in op:
        d.update(kind="valu", wr=R(0) | R(1), rd=R(0) | R(1), perm=True)
    elif op.startswith("v_readfirstlane") or op.startswith("v_readlane"):
        d.update(kind="valu", wr=R(0), rd=allr(1), lane=True)
    elif op.startswith("v_cmp"):
        d.update(kind="valu", wr=R(0), rd=allr(1))
    elif op.startswith("v_"):
        wr = R(0); rd = allr(1)
        if "_co_" in op: wr |= R(1); rd = allr(2)
        if op.startswith("v_fmac") or op.startswith("v_writelane"): rd |= R(0)
        if op.startswith("v_cndmask") and len(ops) == 3: rd |= regs("vcc")
        d.update(kind="valu", wr=wr, rd=rd, trans=op.replace("_e64", "").replace("_e32", "") in TRANS, dpp=("dpp" in op or any(m.startswith("row_") or m.startswith("quad_perm") for m in mods)))
    elif op.startswith("ds_read") or op.startswith("ds_bpermute") or op.startswith("ds_swizzle") or "_rtn" in op:
        d.update(kind="mem", wr=R(0), rd=allr(1))
    elif op.startswith("ds_"):
        d.update(kind="mem", rd=allr(0))
    elif op.startswith("buffer_load") or op.startswith("global_load"):
        if "lds" in mods:
            d.update(kind="mem", rd=allr(0), ldsdma=True, vmem=True)
        else:
            d.update(kind="mem", wr=R(0), rd=allr(1), vmem=True)
    elif op.startswith("buffer_store") or op.startswith("buffer_atomic"):
        d.update(kind="mem", rd=allr(0), vmem=True, wide=(R(0) if ("x4" in op or "x3" in op) else set()))
    elif op.startswith("s_"):
        d.update(kind="salu", wr=R(0) if not op.startswith("s_cmp") and not op.startswith("s_waitcnt") else set(), rd=allr(1))
    return d

def pad_hazards(lines):
    out = []
    hist = []
    def need(cur):
        n = 0
        for p, dist in hist:
            req = 0
            vw = {r for r in p["wr"] if r[0] in "va"}
            sw = {r for r in p["wr"] if r[0] == "s"}
            if p["kind"] == "valu":
                if cur["kind"] == "mfma" and vw & cur["rd"]: req = max(req, 2)
                if cur["kind"] == "valu":
                    if cur.get("perm") and vw & cur["rd"]: req = max(req, 2)
                    if cur.get("dpp") and vw & cur["rd"]: req = max(req, 2)
                    if cur.get("lane") and vw & cur["rd"]: req = max(req, 1)
                    if p.get("trans") and not cur.get("trans") and vw & cur["rd"]: req = max(req, 1)
                    if sw & cur["rd"]: req = max(req, 4 if cur.get("lane") else 2)
                    if p["op"].startswith("v_dot") and cur["op"] != p["op"] and vw & (cur["rd"] | cur["wr"]): req = max(req, 3)
                if cur.get("vmem") and sw & cur["rd"]: req = max(req, 5)
                if cur["kind"] == "salu" and sw & cur["rd"]: req = max(req, 1)
                if p.get("trans") and cur["kind"] in ("mem", "mfma") and vw & cur["rd"]: req = max(req, 2)
            elif p["kind"] == "mfma":
                big = 8 if p["passes"] == 4 else 12
                if cur["kind"] == "mfma":
                    if vw & cur["ab"]: req = max(req, big)
                    if vw & cur["c"] and cur["c"] != vw: req = max(req, big - 2)
                    if vw & cur["wr"] and cur["c"] != vw: req = max(req, big - 2)
                elif cur["kind"] in ("valu", "mem"):
                    if vw & (cur["rd"] | cur["wr"]): req = max(req, big)
                    if cur["kind"] == "valu" and p["c"] & cur["wr"]: req = max(req, 3 if p["passes"] == 4 else 7)
            elif p["kind"] == "mem":
                if p.get("wide") and p["wide"] & cur["wr"]: req = max(req, 2)
            elif p["kind"] == "salu":
                if cur.get("ldsdma") and ("s", 124) in p["wr"]: req = max(req, 1)
            n = max(n, req - dist)
        return n
    for l in lines:
        cur = parse(l)
        if cur is None:
            out.append(l); continue
        n = need(cur)
        if n > 0:
            out.append(f"    s_nop {n-1}")
            hist = [(p, d + n) for p, d in hist]
        out.append(l)
        hist = [(p, d + cur["ws"]) for p, d in hist if d + cur["ws"] < 14]
        hist.append((cur, 0))
    return out

class Asm:
    def __init__(self):
        self.L = []
    def __call__(self, s):
        for line in s.split("\n"):
            line = line.strip()
            if line:
                self.L.append(("" if line.endswith(":") else "    ") + line)
    def c(self, s):
        self.L.append("    ; " + s)
    def text(self):
        return "\n".join(pad_hazards(self.L)) + "\n"

def kernel_header(a, name):
    a.L.append(f".globl {name}")
    a.L.append(".p2align 8")
    a.L.append(f".type {name},@function")
    a.L.append(f"{name}:")

def kernel_desc(a, name, nvgpr, nsgpr, accum):
    a.L.append('.section .rodata,"a"')
    a.L.append(".p2align 6")
    a.L.append(f".amdhsa_kernel {name}")
    a.L.append(f"  .amdhsa_next_free_vgpr {nvgpr}")
    a.L.append(f"  .amdhsa_next_free_sgpr {nsgpr}")
    a.L.append(f"  .amdhsa_accum_offset {accum}")
    a.L.append("  .amdhsa_group_segment_fixed_size 0")
    a.L.append("  .amdhsa_kernarg_size 96")
    a.L.append("  .amdhsa_user_sgpr_count 2")
    a.L.append("  .amdhsa_user_sgpr_kernarg_segment_ptr 1")
    a.L.append("  .amdhsa_system_sgpr_workgroup_id_x 1")
    a.L.append(".end_amdhsa_kernel")
    a.L.append(".text")

def schedule(lines):
    ins = [parse(l) for l in lines]
    n = len(ins)
    preds = [dict() for _ in range(n)]
    lastw, readers = {}, {}
    last_salu = last_mem = None
    def lat(p, c):
        if p["kind"] == "mfma":
            if c["kind"] == "mfma" and c["c"] == p["wr"] and not (p["wr"] & c["ab"]): return 16
            return 48
        if p.get("trans"): return 16
        if p["kind"] == "valu": return 12 if (c["kind"] == "mfma" or c.get("perm") or c.get("dpp")) else 8
        if p["kind"] == "salu": return 8
        return 4
    for i, c in enumerate(ins):
        for r in c["rd"]:
            if r in lastw: preds[i][lastw[r]] = max(preds[i].get(lastw[r], 0), lat(ins[lastw[r]], c))
        for r in c["wr"]:
            if r in lastw: preds[i][lastw[r]] = max(preds[i].get(lastw[r], 0), 48 if ins[lastw[r]]["kind"] == "mfma" and not (c["kind"] == "mfma") else 4)
            for q in readers.get(r, []):
                if q != i: preds[i][q] = max(preds[i].get(q, 0), 16 if ins[q]["kind"] in ("mfma", "mem") else 0)
        if c["kind"] == "salu":
            if last_salu is not None: preds[i][last_salu] = max(preds[i].get(last_salu, 0), 0)
            last_salu = i
        if c["kind"] == "mem":
            if last_mem is not None: preds[i][last_mem] = max(preds[i].get(last_mem, 0), 0)
            last_mem = i
        for r in c["rd"]: readers.setdefault(r, []).append(i)
        for r in c["wr"]:
            lastw[r] = i; readers[r] = []
    succs = [[] for _ in range(n)]
    for i in range(n):
        for p_, l in preds[i].items(): succs[p_].append((i, l))
    slow = lambda c: c.get("trans") or c.get("perm")
    height = [0] * n
    for i in range(n - 1, -1, -1):
        height[i] = (8 if slow(ins[i]) else 4) + max([l + height[j] for j, l in succs[i]], default=0)
    done_t = {}
    remaining = set(range(n))
    t = 0
    slow_free = 0
    mfma_free = 0
    out = []
    while remaining:
        cand = [i for i in remaining if all(p_ in done_t for p_ in preds[i])]
        def ready(i):
            r = max([done_t[p_] + l for p_, l in preds[i].items()], default=0)
            if slow(ins[i]): r = max(r, slow_free)
            if ins[i]["kind"] == "mfma": r = max(r, mfma_free)
            return r
        now = [i for i in cand if ready(i) <= t]
        if now:
            i = max(now, key=lambda k: (ins[k]["kind"] == "mfma", bool(slow(ins[k])), height[k], -k))
        else:
            i = min(cand, key=lambda k: (ready(k), -height[k], k))
            t = ready(i)
        done_t[i] = t
        if slow(ins[i]): slow_free = t + 8
        if ins[i]["kind"] == "mfma": mfma_free = t + 16
        t += 4
        remaining.remove(i)
        out.append(lines[i])
    return out
```

```python
import sys
from asmlib import *

KN = "gated_mix__linear_kernel_hedgehog__glu_gated_glu__prompt_kernel"

WRING, WSLOT = 65536, 20480
PHI_LDS = WRING + 4 * WSLOT
LDS_BYTES = PHI_LDS + 2048
E_PHK, E_VB, E_KVF = 0, 32768, 49152
W2RING = 65536
ACAT_TB = 144 * 8192
PART_KV, PART_Z, G_OFF, XCH = 0x1400000, 0x1700000, 0x1800000, 0x2000000
LOG2E = 0x3FB8AA3B
vLANE = 1
vXA, vG, vQ, vXD, vWD = [2, 3], [4, 5], [[6, 7], [8, 9]], 10, [11, 12, 13]
XF, WF, ACC, TMP = 16, 48, 80, 240
def xf(set_, tt): return XF + 16 * set_ + 4 * tt
def wf(i): return WF + 4 * (i % 8)
def accr(j, tt): return ACC + 16 * j + 4 * tt
vW2D = 13
W2F, A2R, ACC2, vWR, vGP, GDAT = 16, 112, 176, list(range(240, 248)), 104, 176
vFA, vFT = 252, 253
sX, sWQKV, sWPHI, sWO, sWG, sWU, sDBG, sWS = 4, 6, 8, 10, 12, 14, 16, 18
sWAVE, sHF, sTG, sMI, sNI, sXCL, sHB, sKS = 20, 21, 22, 23, 24, 25, 26, 27
srdX, srdW, srdWS, srdM, srdT = 28, [32, 36, 40], 44, 48, 76
sWOFF, sWINC, sWLDS, sXOFF, sXLDS, sCNT, sC = 52, 53, 54, 55, 56, 57, 58
sNC, sONE = 52, 54
sT = 60
sWD, sGW, sOUT, sJ1, sJ2, sKQ, sNB = 72, 74, 80, 82, 83, 84, 85
sPART = 98
srdD, srdW2, srdO = 32, 36, 40
sAOFF, sRA, sSTEP, sPH, sPINC, sLDSB, sABASE, sIT, sTH16 = 86, 87, 88, 89, 90, 91, 92, 93, 94
D2 = 6

OPT = {}
def fst(a, idx, cyc=False):
    if OPT.get("fine"):
        a("s_memtime s[96:97]" if cyc else "s_memrealtime s[96:97]")
        a("s_waitcnt lgkmcnt(0)")
        a(f"v_writelane_b32 v255, s96, {idx}")

class Rec:
    def __init__(self): self.L = []
    def __call__(self, t): self.L.append(t)
def emit_sched(a, rec):
    for t_ in (rec.L if OPT.get("nosched") else schedule(rec.L)): a(t_)
def emit(a, groups):
    for g in groups:
        for t in g: a(t)

def tiles_of(hf):
    if hf == 0:
        return [("q", 0), ("q", 1), ("k", 0), ("k", 1), ("v", 0), ("v", 1), ("g", 0), ("g", 1), ("u", 0), ("u", 1)]
    return [("g", j) for j in range(2, 7)] + [("u", j) for j in range(2, 7)]

def w_read(tile, slot, t, dst):
    kind, jj = tile
    rh, sl = slot >> 1, slot & 1
    if kind in "qkv":
        return f"ds_read_b64_tr_b16 {v(dst + 2*t, 2)}, {v(vQ[jj][rh])} offset:{sl*WSLOT + 64*'qkv'.index(kind) + 1536*t}"
    off = sl*WSLOT + 6144 + (7168 if kind == "u" else 0) + 1792*t + 32*jj
    return f"ds_read_b64_tr_b16 {v(dst + 2*t, 2)}, {v(vG[rh])} offset:{off}"

def x_read(xslot, kk, tt, set_):
    return f"ds_read_b128 {v(xf(set_, tt), 4)}, {v(vXA[kk])} offset:{xslot*32768 + tt*2048}"

def w_dma(hf, slot):
    out = [[f"s_add_u32 m0, {s(sWLDS)}, {slot*WSLOT + i*1024}",
            f"buffer_load_dwordx4 {v(vWD[i])}, {s(srdW[i], 4)}, {s(sWOFF)} offen lds"] for i in range(3 - hf)]
    out[-1].append(f"s_add_u32 {s(sWOFF)}, {s(sWOFF)}, {s(sWINC)}")
    return out

def x_dma(hf, xslot):
    out = [[f"s_add_u32 m0, {s(sXLDS)}, {xslot*32768 + i*1024}",
            f"s_add_u32 {s(sT)}, {s(sXOFF)}, {i*16384}",
            f"buffer_load_dwordx4 {v(vXD)}, {s(srdX, 4)}, {s(sT)} offen lds"] for i in range(3 + 2*hf)]
    out[-1].append(f"s_add_u32 {s(sXOFF)}, {s(sXOFF)}, 128")
    return out

class Lgkm:
    def __init__(self, a): self.a, self.q = a, []
    def issue(self, key, text): self.a(text); self.q.append(key)
    def need(self, keys):
        idx = max([i for i, k in enumerate(self.q) if k in keys], default=-1)
        if idx >= 0:
            n = min(len(self.q) - 1 - idx, 15)
            self.a(f"s_waitcnt lgkmcnt({n})")
            self.q = self.q[len(self.q) - n:] if n else []

def tail_reads(hf, nxt):
    tl, r = tiles_of(hf), []
    def W(j):
        for t in range(2): r.append((("W", (10*nxt + j) % 40), w_read(tl[j], nxt % 4, t, wf(10*nxt + j))))
    W(0)
    if nxt % 2 == 0:
        for tt in range(4): r.append((("X", 0, tt), x_read((nxt >> 1) & 1, 0, tt, 0)))
    for j in range(1, 5): W(j)
    return r

def step1(a, trk, hf, u, dm, vm, first=False):
    tl = tiles_of(hf)
    fill = {g: [] for g in range(10)}
    for j in range(5):
        for t in range(2):
            fill[j].append(("lds", ("W", (10*u + j + 5) % 40), w_read(tl[j + 5], u, t, wf(10*u + j + 5))))
    if u % 2 == 0:
        for tt in range(4): fill[tt].append(("lds", ("X", 1, tt), x_read((u >> 1) & 1, 1, tt, 1)))
    for i, d in enumerate(dm):
        fill[(i*7) // len(dm) if len(dm) > 3 else (2*i + 1)].append(("raw", d))
    tr = tail_reads(hf, (u + 1) % 4)
    per = (len(tr) + 2) // 3
    for i, (key, txt) in enumerate(tr): fill[7 + min(i // per, 2)].append(("lds", key, txt))
    for g in range(10):
        f = list(fill[g])
        for n, tt in enumerate(range(4) if g % 2 == 0 else range(3, -1, -1)):
            trk.need({("W", (10*u + g) % 40), ("X", u % 2, tt)})
            A, B = v(wf(10*u + g), 4), v(xf(u % 2, tt), 4)
            if tl[g][0] == "v": A, B = B, A
            c = v(accr(g, tt), 4)
            a(f"v_mfma_f32_16x16x32_bf16 {c}, {A}, {B}, {'0' if first else c}")
            for _ in range((len(f) + (3 - n)) // (4 - n)):
                e = f.pop(0)
                if e[0] == "lds": trk.issue(e[1], e[2])
                else:
                    for t_ in e[1]: a(t_)
        if g == 6:
            a(f"s_waitcnt vmcnt({vm}) lgkmcnt(0)")
            trk.q = []
            a("s_barrier")

def side_jobs(a, hf, lab):
    a(f"s_cmp_eq_u32 {s(sCNT)}, {s(sJ2)}")
    a(f"s_cbranch_scc0 {lab}_j1")
    a(f"s_lshl_b32 {s(sT)}, {s(sWAVE)}, 8")
    a(f"s_add_u32 m0, {s(sT)}, {PHI_LDS}")
    a(f"s_mov_b32 {s(sT)}, {s(sXCL)}")
    a(f"buffer_load_dword {v(TMP+5)}, {s(srdM, 4)}, 0 offen lds")
    for p in range(3):
        for i in range(2):
            a(f"buffer_store_dwordx4 {v(TMP,4)}, v15, {s(srdWS,4)}, {s(sT)} offen offset:{i*1024} sc1")
        if p < 2: a(f"s_add_u32 {s(sT)}, {s(sT)}, 16384")
    if hf == 1:
        for i in range(2):
            a(f"buffer_store_dwordx4 {v(TMP,4)}, v15, {s(srdWS,4)}, {s(sPART+1)} offen offset:{i*1024} sc1")
        a(f"buffer_store_dwordx4 {v(TMP,4)}, {v(TMP+4)}, {s(srdWS,4)}, {s(sPART+2)} offen sc1")
    a(f"{lab}_j1:")
    a(f"s_cmp_eq_u32 {s(sCNT)}, {s(sJ1)}")
    a(f"s_cbranch_scc0 {lab}_j2")
    a(f"buffer_load_dword {v(TMP+6)}, v14, {s(srdT,4)}, 0 offen")
    a(f"{lab}_j2:")

def main_loop(a, hf):
    lab = f"L_loop{hf}"
    trk = Lgkm(a)
    for key, txt in tail_reads(hf, 0): trk.issue(key, txt)
    a(f"s_mov_b32 {s(sCNT)}, 8")
    nW, nX = 3 - hf, 3 + 2*hf
    step1(a, trk, hf, 0, x_dma(hf, 1) + w_dma(hf, 2) + w_dma(hf, 3), nX + 2*nW, first=True)
    q1 = list(trk.q)
    a(f"s_branch {lab}_u1")
    a(".p2align 6")
    a(f"{lab}:")
    side_jobs(a, hf, lab)
    trk.q = [k for k, _ in tail_reads(hf, 0)]
    for u in range(4):
        if u == 1:
            assert trk.q == q1
            a(f"{lab}_u1:")
        dm = w_dma(hf, (u + 3) % 4)
        if u % 2 == 1: dm = x_dma(hf, ((u - 1) >> 1) & 1) + dm
        step1(a, trk, hf, u, dm, 9)
    a(f"s_sub_u32 {s(sCNT)}, {s(sCNT)}, 1")
    a(f"s_cmp_eq_u32 {s(sCNT)}, 1")
    a(f"s_cselect_b32 {s(sXOFF)}, 0x40000000, {s(sXOFF)}")
    a(f"s_cmp_lg_u32 {s(sCNT)}, 0")
    a(f"s_cbranch_scc1 {lab}")

def setup(a):
    L = v(vLANE)
    a("s_cmp_ge_u32 s2, 256")
    a("s_cbranch_scc1 L_end")
    a(f"s_load_dwordx4 {s(sX, 4)}, s[0:1], 0")
    a(f"s_load_dwordx4 {s(sWG, 4)}, s[0:1], 40")
    a("v_lshrrev_b32 v14, 6, v0")
    a(f"v_and_b32 {L}, 63, v0")
    a(f"v_readfirstlane_b32 {s(sWAVE)}, v14")
    a(f"s_and_b32 {s(sMI)}, s2, 4")
    a(f"s_bfe_u32 {s(sT+2)}, s2, 0x20003")
    a(f"s_add_u32 {s(sMI)}, {s(sMI)}, {s(sT+2)}")
    a(f"s_and_b32 {s(sKQ)}, s2, 3")
    a(f"s_lshr_b32 {s(sNB)}, s2, 5")
    a(f"s_lshl_b32 {s(sNI)}, {s(sKQ)}, 3")
    a(f"s_add_u32 {s(sNI)}, {s(sNI)}, {s(sNB)}")
    a(f"v_lshrrev_b32 v14, 3, {L}")
    a("v_and_b32 v15, 6, v14")
    a(f"v_and_b32 v16, 7, {L}")
    a("v_xor_b32 v15, v15, v16")
    a("v_lshlrev_b32 v15, 4, v15")
    a(f"v_lshl_add_u32 {v(vXD)}, v14, 11, v15")
    a(f"s_lshr_b32 {s(sHF)}, {s(sWAVE)}, 2")
    a(f"s_and_b32 {s(sTG)}, {s(sWAVE)}, 3")
    a(f"s_mov_b32 {s(sWOFF)}, 0")
    a(f"s_mov_b32 {s(srdX+2)}, {256*2048}")
    a(f"s_mov_b32 {s(srdX+3)}, 0x20000")
    for i in range(3): a(f"s_mov_b32 {s(srdW[i]+3)}, 0x20000")
    a(f"s_lshl_b32 {s(sT+9)}, {s(sMI)}, 19")
    a(f"s_cmp_lt_u32 {s(sWAVE)}, 2")
    a("s_cbranch_scc0 L_gu")
    def rho():
        a("v_lshrrev_b32 v18, 1, v15")
        a("v_xor_b32 v17, v18, v15")
        a("v_and_b32 v17, 4, v17")
        a("v_mul_u32_u24 v17, 3, v17")
        a("v_xor_b32 v17, v17, v15")
    a(f"s_mul_i32 {s(sT)}, {s(sTG)}, 3")
    a(f"s_mul_i32 {s(sT+1)}, {s(sTG)}, 192")
    a(f"s_lshl_b32 {s(sT+10)}, {s(sNI)}, 6")
    a(f"s_movk_i32 {s(sT+5)}, 5462")
    a(f"s_movk_i32 {s(sT+7)}, 6144")
    for i in range(3):
        a(f"v_add_u32 v14, {s(sT+1)}, {L}")
        if i < 2: a(f"s_add_u32 {s(sT+1)}, {s(sT+1)}, 64")
        a(f"v_mul_u32_u24 v15, {s(sT+5)}, v14")
        a("v_lshrrev_b32 v15, 16, v15")
        a("v_mul_u32_u24 v16, 12, v15")
        a("v_sub_u32 v16, v14, v16")
        rho()
        a("v_and_b32 v18, 2, v18")
        a("v_xor_b32 v18, v18, v16")
        a("v_and_b32 v18, 3, v18")
        a("v_lshrrev_b32 v16, 2, v16")
        a("v_lshlrev_b32 v16, 11, v16")
        a("v_lshl_add_u32 v16, v18, 4, v16")
        a(f"v_mad_u32_u24 v16, v17, {s(sT+7)}, v16")
        a(f"v_add_u32 {v(vWD[i])}, {s(sT+10)}, v16")
    a(f"s_mov_b32 {s(sWINC)}, {32*6144}")
    a(f"s_mov_b32 {s(sT+4)}, {s(sT)}")
    a("s_waitcnt lgkmcnt(0)")
    for i in range(3):
        a(f"s_mov_b64 {s(srdW[i],2)}, {s(sWQKV,2)}")
        a(f"s_mov_b32 {s(srdW[i]+2)}, {1024*6144}")
    a("s_branch L_wdone")
    a("L_gu:")
    a(f"s_mul_i32 {s(sT)}, {s(sTG)}, 3")
    a(f"s_lshl_b32 {s(sT+1)}, {s(sTG)}, 1")
    a(f"s_add_u32 {s(sT+1)}, {s(sT+1)}, 12")
    a(f"s_mul_i32 {s(sT+2)}, {s(sTG)}, 5")
    a(f"s_add_u32 {s(sT+2)}, {s(sT+2)}, 12")
    a(f"s_cmp_eq_u32 {s(sHF)}, 0")
    a(f"s_cselect_b32 {s(sT+4)}, {s(sT)}, {s(sT+2)}")
    a(f"s_cselect_b32 {s(sT)}, {s(sT)}, {s(sT+1)}")
    a(f"s_mul_i32 {s(sT+10)}, {s(sNI)}, 224")
    a(f"s_movk_i32 {s(sT+5)}, 4682")
    a(f"s_movk_i32 {s(sT+7)}, 7168")
    for i in range(3):
        a(f"s_add_u32 {s(sT+12)}, {s(sT)}, {i}")
        a(f"s_cmp_ge_u32 {s(sT+12)}, 13")
        a(f"s_cselect_b32 {s(sT+13)}, 13, 6")
        a(f"s_sub_u32 {s(sT+13)}, {s(sT+12)}, {s(sT+13)}")
        a(f"s_lshl_b32 {s(sT+13)}, {s(sT+13)}, 6")
        a(f"v_add_u32 v14, {s(sT+13)}, {L}")
        a(f"v_mul_u32_u24 v15, {s(sT+5)}, v14")
        a("v_lshrrev_b32 v15, 16, v15")
        a("v_mul_u32_u24 v16, 14, v15")
        a("v_sub_u32 v16, v14, v16")
        rho()
        a("v_lshlrev_b32 v16, 4, v16")
        a(f"v_mad_u32_u24 v16, v17, {s(sT+7)}, v16")
        a(f"v_add_u32 {v(vWD[i])}, {s(sT+10)}, v16")
    a(f"s_mov_b32 {s(sWINC)}, {32*7168}")
    a("s_waitcnt lgkmcnt(0)")
    for i in range(3):
        a(f"s_cmp_ge_u32 {s(sT)}, {13 - i}")
        a(f"s_cselect_b64 {s(srdW[i], 2)}, {s(sWU, 2)}, {s(sWG, 2)}")
        a(f"s_mov_b32 {s(srdW[i]+2)}, {1024*7168}")
    a("L_wdone:")
    a(f"s_add_u32 {s(srdX)}, {s(sX)}, {s(sT+9)}")
    a(f"s_addc_u32 {s(srdX+1)}, {s(sX+1)}, 0")
    a(f"s_lshl_b32 {s(sWLDS)}, {s(sT)}, 10")
    a(f"s_add_u32 {s(sWLDS)}, {s(sWLDS)}, {WRING}")
    a(f"s_lshl_b32 {s(sXLDS)}, {s(sT+4)}, 10")
    a(f"s_lshl_b32 {s(sXOFF)}, {s(sT+4)}, 14")

def part_offsets(a, d):
    a(f"s_lshl_b32 {s(d)}, {s(sNI)}, 3")
    a(f"s_add_u32 {s(d)}, {s(d)}, {s(sMI)}")
    a(f"s_lshl_b32 {s(d+1)}, {s(d)}, 13")
    a(f"s_lshl_b32 {s(d+2)}, {s(sTG)}, 11")
    a(f"s_add_u32 {s(d+1)}, {s(d+1)}, {s(d+2)}")
    a(f"s_add_u32 {s(d+1)}, {s(d+1)}, {PART_KV}")
    a(f"s_lshl_b32 {s(d+2)}, {s(d)}, 8")
    a(f"s_lshl_b32 {s(d+3)}, {s(sTG)}, 6")
    a(f"s_add_u32 {s(d+2)}, {s(d+2)}, {s(d+3)}")
    a(f"s_add_u32 {s(d+2)}, {s(d+2)}, {PART_Z}")

def prologue(a, hf):
    L = v(vLANE)
    emit(a, x_dma(hf, 0) + w_dma(hf, 0))
    fst(a, 3)
    a(f"s_load_dwordx4 {s(sWPHI, 4)}, s[0:1], 16")
    a(f"s_load_dwordx4 {s(sWD, 4)}, s[0:1], 56")
    a(f"s_load_dwordx2 {s(sOUT, 2)}, s[0:1], 72")
    a(f"s_load_dwordx4 {s(sDBG, 4)}, s[0:1], 80")
    a(f"v_lshrrev_b32 v14, 4, {L}")
    a(f"v_bfe_u32 v15, {L}, 2, 2")
    a(f"v_and_b32 v16, 3, {L}")
    a("v_lshrrev_b32 v17, 1, v14")
    a("v_and_b32 v18, 1, v14")
    a("v_lshlrev_b32 v19, 4, v17")
    a("v_lshl_add_u32 v19, v18, 2, v19")
    a("v_add_u32 v19, v19, v15")
    a("v_mul_u32_u24 v20, 224, v19")
    a("v_lshl_add_u32 v20, v16, 3, v20")
    a(f"v_add_u32 {v(vG[0])}, {WRING}, v20")
    a(f"v_add_u32 {v(vG[1])}, {WRING + 2*WSLOT}, v20")
    if hf == 0:
        a("v_mul_u32_u24 v20, 192, v19")
        a("v_lshl_add_u32 v20, v16, 3, v20")
        a("v_lshlrev_b32 v21, 5, v18")
        a("v_xor_b32 v22, 32, v21")
        a("v_add_u32 v21, v20, v21")
        a("v_add_u32 v22, v20, v22")
        a(f"v_add_u32 {v(vQ[0][0])}, {WRING}, v21")
        a(f"v_add_u32 {v(vQ[0][1])}, {WRING + 2*WSLOT}, v21")
        a(f"v_add_u32 {v(vQ[1][0])}, {WRING}, v22")
        a(f"v_add_u32 {v(vQ[1][1])}, {WRING + 2*WSLOT}, v22")
    a(f"v_and_b32 v19, 15, {L}")
    a(f"v_and_b32 v20, 6, {L}")
    a("v_xor_b32 v20, v20, v14")
    a("v_lshlrev_b32 v20, 4, v20")
    a("v_lshl_add_u32 v20, v19, 7, v20")
    a(f"s_lshl_b32 {s(sT+1)}, {s(sTG)}, 13")
    a(f"v_add_u32 {v(vXA[0])}, {s(sT+1)}, v20")
    a(f"v_xor_b32 {v(vXA[1])}, 64, {v(vXA[0])}")
    emit(a, w_dma(hf, 1))
    for i in range(4): a(f"v_mov_b32 {v(TMP + i)}, -1")
    a(f"v_lshlrev_b32 v15, 4, {L}")
    a(f"v_and_b32 {v(TMP+4)}, 0x30, {L}")
    a(f"v_lshlrev_b32 {v(TMP+5)}, 2, v0")
    a(f"s_lshl_b32 {s(sXCL)}, {s(sMI)}, 3")
    a(f"s_add_u32 {s(sXCL)}, {s(sXCL)}, {s(sNB)}")
    a(f"s_lshl_b32 {s(sXCL)}, {s(sXCL)}, 2")
    a(f"s_add_u32 {s(sXCL)}, {s(sXCL)}, {s(sKQ)}")
    a(f"s_mul_i32 {s(sXCL)}, {s(sXCL)}, 49152")
    a(f"s_lshl_b32 {s(sT+1)}, {s(sWAVE)}, 11")
    a(f"s_add_u32 {s(sXCL)}, {s(sXCL)}, {s(sT+1)}")
    a(f"s_add_u32 {s(sXCL)}, {s(sXCL)}, {XCH}")
    if hf == 1: part_offsets(a, sPART)
    a(f"s_sub_u32 {s(sT+1)}, {s(sWAVE)}, 6")
    a(f"s_cmp_ge_u32 {s(sWAVE)}, 6")
    a(f"s_cselect_b32 {s(sJ1)}, {s(sT+1)}, {s(sWAVE)}")
    a(f"s_sub_u32 {s(sT+1)}, {s(sJ1)}, 3")
    a(f"s_add_u32 {s(sJ2)}, {s(sJ1)}, 3")
    a(f"s_cmp_ge_u32 {s(sJ1)}, 3")
    a(f"s_cselect_b32 {s(sJ2)}, {s(sT+1)}, {s(sJ2)}")
    a(f"s_add_u32 {s(sJ1)}, {s(sJ1)}, 2")
    a(f"s_add_u32 {s(sJ2)}, {s(sJ2)}, 2")
    a(f"s_cmp_eq_u32 {s(sWAVE)}, 0")
    a(f"s_cselect_b32 {s(sT)}, 64, 224")
    a(f"s_cselect_b32 {s(sT+1)}, 64, 32")
    a(f"s_mul_i32 {s(sT)}, {s(sT)}, s2")
    a(f"s_lshl_b32 {s(sT+2)}, {s(sWAVE)}, 5")
    a(f"s_max_u32 {s(sT+2)}, {s(sT+2)}, 32")
    a(f"s_add_u32 {s(sT)}, {s(sT)}, {s(sT+2)}")
    a(f"s_sub_u32 {s(sT)}, {s(sT)}, 32")
    a(f"v_add_u32 v14, {s(sT)}, {L}")
    a("v_lshlrev_b32 v14, 7, v14")
    a(f"v_cmp_gt_u32 vcc, {s(sT+1)}, {L}")
    a("v_cndmask_b32 v14, -1, v14, vcc")
    a("s_waitcnt lgkmcnt(0)")
    a(f"s_mov_b64 {s(srdWS,2)}, {s(sWS,2)}")
    a(f"s_mov_b32 {s(srdWS+2)}, 0x10000000")
    a(f"s_mov_b32 {s(srdWS+3)}, 0x20000")
    a(f"s_lshl_b32 {s(sT)}, {s(sNI)}, 11")
    a(f"s_add_u32 {s(srdM)}, {s(sWPHI)}, {s(sT)}")
    a(f"s_addc_u32 {s(srdM+1)}, {s(sWPHI+1)}, 0")
    a(f"s_mov_b32 {s(srdM+2)}, 2048")
    a(f"s_mov_b32 {s(srdM+3)}, 0x20000")
    a(f"s_cmp_eq_u32 {s(sWAVE)}, 0")
    a(f"s_cselect_b64 {s(srdT,2)}, {s(sWO,2)}, {s(sWD,2)}")
    a(f"s_mov_b32 {s(srdT+2)}, {3584*2048}")
    a(f"s_cselect_b32 {s(srdT+2)}, {1024*2048}, {s(srdT+2)}")
    a(f"s_mov_b32 {s(srdT+3)}, 0x20000")
    fst(a, 4)
    a(f"s_waitcnt vmcnt({3 - hf})")
    fst(a, 5)
    a("s_barrier")

def xlane_reduce(a, op, r4, post=None):
    A, B, C, D = r4
    a(f"v_permlane16_swap_b32 {v(A)}, {v(B)}")
    a(f"v_permlane16_swap_b32 {v(C)}, {v(D)}")
    a(f"{op} {v(A)}, {v(A)}, {v(B)}")
    a(f"{op} {v(C)}, {v(C)}, {v(D)}")
    a(f"v_permlane32_swap_b32 {v(A)}, {v(C)}")
    a(f"{op} {v(A)}, {v(A)}, {v(C)}")
    if post: post(A)
    a(f"v_mov_b32 {v(C)}, {v(A)}")
    a(f"v_permlane32_swap_b32 {v(A)}, {v(C)}")
    a(f"v_mov_b32 {v(B)}, {v(A)}")
    a(f"v_mov_b32 {v(D)}, {v(C)}")
    a(f"v_permlane16_swap_b32 {v(A)}, {v(B)}")
    a(f"v_permlane16_swap_b32 {v(C)}, {v(D)}")
    for x in r4: a(f"v_mov_b32 {v(x+1)}, {v(x)}")

def feature_map(a, T0, T1, PF, EM, PHI, ST):
    P = lambda tt, i: (T0 if i < 4 else T1) + 4*tt + (i & 3)
    E = lambda tt, i: EM + 8*tt + i
    for tt in range(4):
        for h in range(4):
            a(f"v_cvt_pk_bf16_f32 {v(EM + 4*tt + h)}, {v(P(tt, 2*h))}, {v(P(tt, 2*h + 1))}")
    for tt in range(4):
        for j in range(2):
            a(f"v_mfma_f32_16x16x32_bf16 {v((T0, T1)[j] + 4*tt, 4)}, {v(PF + 4*j, 4)}, {v(EM + 4*tt, 4)}, 0")
    MX = [ST + 2*tt for tt in range(4)]
    MN = [ST + 8 + 2*tt for tt in range(4)]
    for op3, op2, R in (("v_max3_f32", "v_max_f32", MX), ("v_min3_f32", "v_min_f32", MN)):
        for tt in range(4): a(f"{op3} {v(R[tt])}, {v(P(tt,0))}, {v(P(tt,1))}, {v(P(tt,2))}")
        for tt in range(4): a(f"{op3} {v(R[tt])}, {v(R[tt])}, {v(P(tt,3))}, {v(P(tt,4))}")
        for tt in range(4): a(f"{op3} {v(R[tt])}, {v(R[tt])}, {v(P(tt,5))}, {v(P(tt,6))}")
        for tt in range(4): a(f"{op2} {v(R[tt])}, {v(R[tt])}, {v(P(tt,7))}")
    xlane_reduce(a, "v_max_f32", MX, post=lambda r: a(f"v_mul_f32 {v(r)}, {s(sC)}, {v(r)}"))
    xlane_reduce(a, "v_min_f32", MN, post=lambda r: a(f"v_mul_f32 {v(r)}, {s(sC)}, {v(r)}"))
    for tt in range(4):
        for h in range(4):
            a(f"v_pk_fma_f32 {v(E(tt,2*h),2)}, {v(P(tt,2*h),2)}, {s(sC,2)}, {v(MN[tt],2)} neg_lo:[1,0,0] neg_hi:[1,0,0]")
        for h in range(4):
            a(f"v_pk_fma_f32 {v(P(tt,2*h),2)}, {v(P(tt,2*h),2)}, {s(sC,2)}, {v(MX[tt],2)} neg_lo:[0,0,1] neg_hi:[0,0,1]")
    for tt in range(4):
        for i in range(8): a(f"v_exp_f32 {v(P(tt,i))}, {v(P(tt,i))}")
        for i in range(8): a(f"v_exp_f32 {v(E(tt,i))}, {v(E(tt,i))}")
    for F, R in ((P, MX), (E, MN)):
        for tt in range(4): a(f"v_pk_add_f32 {v(R[tt],2)}, {v(F(tt,0),2)}, {v(F(tt,2),2)}")
        for tt in range(4): a(f"v_pk_add_f32 {v(R[tt],2)}, {v(R[tt],2)}, {v(F(tt,4),2)}")
        for tt in range(4): a(f"v_pk_add_f32 {v(R[tt],2)}, {v(R[tt],2)}, {v(F(tt,6),2)}")
        for tt in range(4): a(f"v_add_f32 {v(R[tt])}, {v(R[tt])}, {v(R[tt]+1)}")
    xlane_reduce(a, "v_add_f32", MX, post=lambda r: a(f"v_rcp_f32 {v(r)}, {v(r)}"))
    xlane_reduce(a, "v_add_f32", MN, post=lambda r: a(f"v_rcp_f32 {v(r)}, {v(r)}"))
    for tt in range(4):
        for F, R in ((P, MX), (E, MN)):
            for h in range(4):
                a(f"v_pk_mul_f32 {v(F(tt,2*h),2)}, {v(F(tt,2*h),2)}, {v(R[tt],2)}")
    for tt in range(4):
        for jj, F in enumerate((P, E)):
            for h in range(4):
                a(f"v_cvt_pk_bf16_f32 {v(PHI + 8*tt + 4*jj + h)}, {v(F(tt,2*h))}, {v(F(tt,2*h+1))}")

def glu_tiles(a, tiles, ks, half_store=False):
    for G, U in tiles:
        for i in range(0, 16, 2): a(f"v_pk_mul_f32 {v(G+i,2)}, {v(G+i,2)}, {s(sNC,2)}")
        for i in range(16): a(f"v_exp_f32 {v(G+i)}, {v(G+i)}")
        for i in range(0, 16, 2): a(f"v_pk_add_f32 {v(G+i,2)}, {v(G+i,2)}, {s(sONE,2)}")
        for i in range(16): a(f"v_rcp_f32 {v(G+i)}, {v(G+i)}")
        for i in range(0, 16, 2): a(f"v_pk_mul_f32 {v(U+i,2)}, {v(U+i,2)}, {v(G+i,2)}")
    G0 = tiles[0][0]
    for tt in range(4):
        for n, (G, U) in enumerate(tiles):
            for h in range(2):
                a(f"v_cvt_pk_bf16_f32 {v(G0 + 4*tt + 2*n + h)}, {v(U + 4*tt + 2*h)}, {v(U + 4*tt + 2*h + 1)}")
        w = 2 if half_store else 4
        a(f"buffer_store_dwordx{w} {v(G0 + 4*tt, w)}, v2, {s(srdWS,4)}, {s(ks)} offen offset:{tt*1024} sc1")

def ks_normal(a, j, d=sKS):
    a(f"s_mul_i32 {s(d)}, {s(sNI)}, {3*8192}")
    a(f"s_add_u32 {s(d)}, {s(d)}, {(32 + j)*8192}")
    a(f"s_add_u32 {s(d)}, {s(d)}, {s(sHB)}")

def w2_load(st):
    u = st % 8
    return [f"s_add_u32 m0, {s(sLDSB)}, {u*8192}",
            f"s_add_u32 {s(sPH)}, {s(sPH)}, {s(sPINC)}",
            f"buffer_load_dwordx4 {v(vW2D)}, {s(srdW2,4)}, {s(sRA)} offen lds",
            f"s_cmp_eq_u32 {s(sPH)}, 3",
            f"s_cselect_b32 {s(sT+2)}, 98304, {s(sSTEP)}",
            f"s_cselect_b32 {s(sPH)}, 0, {s(sPH)}",
            f"s_add_u32 {s(sRA)}, {s(sRA)}, {s(sT+2)}"]

def epi_common(a):
    L = v(vLANE)
    for i in range(2):
        a(f"s_mov_b32 {s(sC+i)}, {LOG2E}")
        a(f"s_mov_b32 {s(sNC+i)}, {LOG2E | 0x80000000}")
        a(f"s_mov_b32 {s(sONE+i)}, 1.0")
    a(f"s_lshr_b32 {s(sT)}, {s(sTG)}, 1")
    a(f"s_lshl_b32 {s(sT+1)}, {s(sMI)}, 1")
    a(f"s_add_u32 {s(sT)}, {s(sT)}, {s(sT+1)}")
    a(f"s_mul_i32 {s(sHB)}, {s(sT)}, {ACAT_TB}")
    a(f"s_and_b32 {s(sT)}, {s(sTG)}, 1")
    a(f"s_lshl_b32 {s(sT)}, {s(sT)}, 12")
    a(f"s_add_u32 {s(sHB)}, {s(sHB)}, {s(sT)}")
    a(f"v_lshlrev_b32 v2, 4, {L}")
    a(f"v_lshrrev_b32 v14, 4, {L}")
    a(f"v_and_b32 v15, 15, {L}")
    a(f"s_and_b32 {s(sT)}, {s(sWAVE)}, 1")
    a(f"s_lshl_b32 {s(sT)}, {s(sT)}, 3")
    a(f"v_lshl_or_b32 {v(vW2D)}, v14, 1, {s(sT)}")
    a(f"v_xor_b32 v15, v15, {v(vW2D)}")
    a("v_lshlrev_b32 v15, 4, v15")
    a("v_lshl_add_u32 v15, v14, 11, v15")
    a(f"s_lshl_b32 {s(sT)}, {s(sNB)}, 8")
    a(f"v_add_u32 {v(vW2D)}, {s(sT)}, v15")
    a(f"s_lshl_b32 {s(sTH16)}, {s(sTG)}, 13")
    a(f"s_mul_i32 {s(sRA)}, {s(sKQ)}, {896*2048}")
    a(f"s_add_u32 {s(sRA)}, {s(sRA)}, {s(sTH16)}")
    a(f"s_lshl_b32 {s(sT)}, {s(sHF)}, 15")
    a(f"s_add_u32 {s(sRA)}, {s(sRA)}, {s(sT)}")
    a(f"s_mov_b32 {s(sSTEP)}, 65536")
    a(f"s_mov_b32 {s(sPH)}, 0")
    a(f"s_mov_b32 {s(sPINC)}, 1")
    a(f"s_lshl_b32 {s(sLDSB)}, {s(sWAVE)}, 10")
    a(f"s_add_u32 {s(sLDSB)}, {s(sLDSB)}, {W2RING}")
    a(f"v_lshlrev_b32 v15, 4, {L}")
    a("v_and_b32 v15, 0xf0, v15")
    a("v_lshl_add_u32 v14, v14, 11, v15")

def srd_after_loop(a):
    a(f"s_mov_b64 {s(srdD,2)}, {s(sDBG,2)}")
    a(f"s_mov_b32 {s(srdD+2)}, 256")
    a(f"s_mov_b64 {s(srdW2,2)}, {s(sWD,2)}")
    a(f"s_mov_b32 {s(srdW2+2)}, {3584*2048}")
    a(f"s_mov_b64 {s(srdO,2)}, {s(sOUT,2)}")
    a(f"s_mov_b32 {s(srdO+2)}, {2048*2048}")
    a(f"s_mov_b64 {s(srdM,2)}, {s(sGW,2)}")

def g_loads(a):
    a(f"s_lshl_b32 {s(sT+4)}, {s(sNB)}, 5")
    a(f"s_lshl_b32 {s(sT+5)}, {s(sWAVE)}, 2")
    a(f"s_add_u32 {s(sT+4)}, {s(sT+4)}, {s(sT+5)}")
    a(f"s_lshl_b32 {s(sT+5)}, {s(sT+4)}, 11")
    for i in range(8):
        a(f"buffer_load_dwordx4 {v(GDAT+4*i,4)}, v14, {s(srdX,4)}, {s(sT+5)} offen offset:{256*i}")
    for i in range(8):
        a(f"buffer_load_dwordx4 {v(GDAT+32+4*i,4)}, v15, {s(srdM,4)}, 0 offen offset:{256*i}")

def epilogue0(a):
    L = v(vLANE)
    PF = 240
    epi_common(a)
    srd_after_loop(a)
    a(f"v_lshrrev_b32 v3, 2, {L}")
    a("v_lshlrev_b32 v3, 6, v3")
    a(f"v_and_b32 v4, 3, {L}")
    a("v_lshl_add_u32 v3, v4, 3, v3")
    a(f"v_add_u32 v3, {PHI_LDS}, v3")
    for j in range(2):
        for t in range(2):
            a(f"ds_read_b64_tr_b16 {v(PF + 4*j + 2*t, 2)}, v3 offset:{t*1024 + 32*j}")
    a(f"v_and_b32 v8, 6, {L}")
    a("v_lshlrev_b32 v8, 1, v8")
    a(f"v_bfe_u32 v9, {L}, 3, 1")
    a("v_lshl_or_b32 v8, v9, 1, v8")
    a(f"v_and_b32 v9, 1, {L}")
    a("v_or_b32 v8, v8, v9")
    a(f"v_lshrrev_b32 v9, 4, {L}")
    a("v_xor_b32 v8, v8, v9")
    a(f"v_and_b32 v9, 15, {L}")
    a("v_lshlrev_b32 v9, 7, v9")
    a(f"s_lshl_b32 {s(sT)}, {s(sTG)}, 13")
    a(f"v_add_u32 v9, {s(sT)}, v9")
    for j in range(4):
        a(f"v_xor_b32 v10, {4*j}, v8")
        a(f"v_lshl_add_u32 {v(4+j)}, v10, 3, v9")
    a(f"s_lshl_b32 {s(sT)}, {s(sTG)}, 12")
    a(f"v_add_u32 v8, {s(sT)}, v2")
    a("s_waitcnt vmcnt(0) lgkmcnt(0)")
    a("s_barrier")
    fst(a, 11)
    for st in range(D2):
        for t_ in w2_load(st): a(t_)
    Q0, Q1, K0, K1_, V0, V1, G0, G1, U0, U1 = [ACC + 16*j for j in range(10)]
    EM, PHI = 16, 48
    r = Rec()
    for i, Vi in enumerate((V0, V1)):
        for u in range(2):
            for h in range(4):
                r(f"v_cvt_pk_bf16_f32 {v(Vi + 8*u + h)}, {v(Vi + 8*u + 2*h)}, {v(Vi + 8*u + 2*h + 1)}")
            r(f"ds_write_b128 v8, {v(Vi + 8*u, 4)} offset:{E_VB + (2*u + i)*1024}")
    feature_map(r, K0, K1_, PF, EM, PHI, PHI)
    for tt in range(4):
        for j in range(4):
            r(f"ds_write_b64 {v(4+j)}, {v(PHI + 8*tt + 2*j, 2)} offset:{E_PHK + tt*2048}")
    emit_sched(a, r)
    a("s_waitcnt lgkmcnt(0)")
    fst(a, 13)
    a("s_barrier")
    fst(a, 14)
    r = Rec()
    ks_normal(r, 0)
    glu_tiles(r, [(G0, U0), (G1, U1)], sKS)
    emit_sched(a, r)
    g_loads(a)
    fst(a, 15)
    r = Rec()
    feature_map(r, Q0, Q1, PF, EM, PHI, PHI)
    emit_sched(a, r)
    a(f"s_lshl_b32 {s(sKS)}, {s(sNI)}, 13")
    a(f"s_add_u32 {s(sKS)}, {s(sKS)}, {s(sHB)}")
    a(f"s_mov_b32 {s(sT)}, 0x358637bd")
    fst(a, 16)
    a("s_waitcnt vmcnt(0)")
    fst(a, 17)
    a("s_barrier")
    fst(a, 18)
    KF = K0
    for n in (4, 5, 0, 1, 2, 3):
        a(f"ds_read_b128 {v(KF + 4*n, 4)}, v2 offset:{E_KVF + n*1024}")
    a("s_waitcnt lgkmcnt(0)")
    r = Rec()
    NUM = lambda tt, i: Q0 + 16*i + 4*tt if i < 2 else V0 + 4*tt
    for i in (2, 0, 1):
        for tt in range(4):
            for jj in range(2):
                r(f"v_mfma_f32_16x16x32_bf16 {v(NUM(tt,i),4)}, {v(KF + 4*(2*i+jj),4)}, {v(PHI + 8*tt + 4*jj,4)}, {'0' if jj == 0 else v(NUM(tt,i),4)}")
    for tt in range(4): r(f"v_add_f32 {v(NUM(tt,2))}, {s(sT)}, {v(NUM(tt,2))}")
    for tt in range(4): r(f"v_rcp_f32 {v(NUM(tt,2))}, {v(NUM(tt,2))}")
    for tt in range(4): r(f"v_mov_b32 {v(NUM(tt,2)+1)}, {v(NUM(tt,2))}")
    for tt in range(4):
        for i in range(2):
            for h in range(2):
                r(f"v_pk_mul_f32 {v(NUM(tt,i)+2*h,2)}, {v(NUM(tt,i)+2*h,2)}, {v(NUM(tt,2),2)}")
        for i in range(2):
            for h in range(2):
                r(f"v_cvt_pk_bf16_f32 {v(Q0 + 4*tt + 2*i + h)}, {v(NUM(tt,i)+2*h)}, {v(NUM(tt,i)+2*h+1)}")
    emit_sched(a, r)
    fst(a, 19)

def flag_store(a, wave, val, lab):
    a(f"s_cmp_eq_u32 {s(sWAVE)}, {wave}")
    a(f"s_cbranch_scc0 {lab}")
    a(f"s_lshl_b32 {s(sT+8)}, {s(sNI)}, 3")
    a(f"s_add_u32 {s(sT+8)}, {s(sT+8)}, {s(sMI)}")
    a(f"v_mov_b32 v254, {val}")
    a("s_mov_b64 exec, 1")
    a(f"buffer_store_byte v254, off, {s(srdD,4)}, {s(sT+8)} sc0 sc1")
    a("s_mov_b64 exec, -1")
    a(f"{lab}:")

def flag_load(a):
    a(f"buffer_load_ubyte v254, {v(vFA)}, {s(srdD,4)}, 0 offen sc0 sc1")

def flag_spin(a, lab):
    a(f"s_mov_b32 {s(sT+9)}, 0x200000")
    a(f"{lab}:")
    a(f"v_cmp_gt_u32 vcc, {v(vFT)}, v254")
    a(f"s_cbranch_vccz {lab}_ok")
    a(f"s_sub_u32 {s(sT+9)}, {s(sT+9)}, 1")
    a(f"s_cbranch_scc1 {lab}_ok")
    flag_load(a)
    a("s_waitcnt vmcnt(0)")
    a(f"s_branch {lab}")
    a(f"{lab}_ok:")

def epilogue1(a):
    L = v(vLANE)
    epi_common(a)
    srd_after_loop(a)
    Gt = [ACC + 16*j for j in range(5)]
    Ut = [ACC + 80 + 16*j for j in range(5)]
    sP = sPART
    a(f"v_and_b32 v7, 0x30, {L}")
    a(f"v_and_b32 v8, 15, {L}")
    a(f"v_lshrrev_b32 v10, 2, {L}")
    a("v_and_b32 v11, 6, v10")
    a("v_lshlrev_b32 v11, 1, v11")
    a("v_lshrrev_b32 v12, 3, v10")
    a("v_lshl_or_b32 v11, v12, 1, v11")
    a("v_and_b32 v12, 1, v10")
    a("v_or_b32 v11, v11, v12")
    a(f"v_and_b32 v12, 3, {L}")
    a(f"s_lshl_b32 {s(sT+8)}, {s(sTG)}, 2")
    a(f"v_or_b32 v12, {s(sT+8)}, v12")
    a("v_xor_b32 v11, v11, v12")
    a("v_lshlrev_b32 v11, 3, v11")
    a("v_lshl_add_u32 v3, v10, 7, v11")
    for i in range(4): a(f"v_mov_b32 {v(240+i)}, 0x3f803f80")
    a(f"v_and_b32 {v(vFA)}, 7, {L}")
    a(f"s_lshl_b32 {s(sT+8)}, {s(sNI)}, 3")
    a(f"v_add_u32 {v(vFA)}, {s(sT+8)}, {v(vFA)}")
    a(f"v_mov_b32 {v(vFT)}, 1")
    a("s_waitcnt vmcnt(0) lgkmcnt(0)")
    a("s_barrier")
    fst(a, 11)
    flag_store(a, 4, 1, "L_f1")
    for st in range(D2):
        for t_ in w2_load(st): a(t_)
    r = Rec()
    ks_normal(r, 1)
    glu_tiles(r, [(Gt[0], Ut[0]), (Gt[1], Ut[1])], sKS)
    emit_sched(a, r)
    flag_load(a)
    a(f"v_cmp_eq_u32 {s(sT+6,2)}, 0, v8")
    a("s_setprio 3")
    fst(a, 13)
    a("s_barrier")
    fst(a, 14)
    AF = lambda u: 16 + 4*u
    BF = lambda u, i: (Gt[0] + 8*u + 4*i) if u < 4 else (Ut[0] + 8*(u-4) + 4*i)
    KVA = 48
    def kvm(uu):
        for i in range(3):
            a(f"v_mfma_f32_16x16x32_bf16 {v(KVA+4*i,4)}, {v(AF(uu),4)}, {v(240 if i == 2 else BF(uu,i),4)}, {'0' if uu == 0 else v(KVA+4*i,4)}")
    for u in range(8):
        for t in range(2):
            a(f"ds_read_b64_tr_b16 {v(AF(u) + 2*t, 2)}, v3 offset:{E_PHK + u*4096 + t*2048}")
        for i in range(2):
            a(f"ds_read_b128 {v(BF(u,i),4)}, v2 offset:{E_VB + (2*u+i)*1024}")
        if u >= 3:
            a("s_waitcnt lgkmcnt(12)")
            kvm(u - 3)
    for uu in range(5, 8):
        a(f"s_waitcnt lgkmcnt({4*(7-uu)})")
        kvm(uu)
    for i in range(2):
        a(f"buffer_store_dwordx4 {v(KVA+4*i,4)}, v2, {s(srdWS,4)}, {s(sP+1)} offen offset:{i*1024} sc1")
    a(f"s_mov_b64 exec, {s(sT+6,2)}")
    a(f"buffer_store_dwordx4 {v(KVA+8,4)}, v7, {s(srdWS,4)}, {s(sP+2)} offen sc1")
    a("s_mov_b64 exec, -1")
    fst(a, 15)
    a(f"s_lshl_b32 {s(sT+3)}, {s(sMI)}, 13")
    a(f"s_sub_u32 {s(sP+1)}, {s(sP+1)}, {s(sT+3)}")
    a(f"s_lshl_b32 {s(sT+3)}, {s(sMI)}, 8")
    a(f"s_sub_u32 {s(sP+2)}, {s(sP+2)}, {s(sT+3)}")
    r = Rec()
    ks_normal(r, 2)
    glu_tiles(r, [(Gt[2], Ut[2]), (Gt[3], Ut[3])], sKS)
    r(f"s_lshr_b32 {s(sT+11)}, {s(sNI)}, 1")
    r(f"s_lshl_b32 {s(sT+11)}, {s(sT+11)}, 13")
    r(f"s_add_u32 {s(sT+11)}, {s(sT+11)}, {128*8192}")
    r(f"s_add_u32 {s(sT+11)}, {s(sT+11)}, {s(sHB)}")
    r(f"s_and_b32 {s(sT+3)}, {s(sNI)}, 1")
    r(f"s_lshl_b32 {s(sT+3)}, {s(sT+3)}, 3")
    r(f"s_add_u32 {s(sT+11)}, {s(sT+11)}, {s(sT+3)}")
    glu_tiles(r, [(Gt[4], Ut[4])], sT+11, half_store=True)
    emit_sched(a, r)
    a("s_setprio 0")
    fst(a, 12)
    a("s_waitcnt vmcnt(11)")
    flag_spin(a, "L_p1")
    piece = {(m, i): ACC + 12*m + 4*i for m in range(8) for i in range(3)}
    def gather():
        a(f"s_mov_b32 {s(sT+3)}, {s(sP+1)}")
        for m in range(8):
            for i in range(2):
                a(f"buffer_load_dwordx4 {v(piece[(m,i)],4)}, v2, {s(srdWS,4)}, {s(sT+3)} offen offset:{i*1024} sc1")
            a(f"buffer_load_dwordx4 {v(piece[(m,2)],4)}, v7, {s(srdWS,4)}, {s(sP+2)} offen offset:{m*256} sc1")
            if m < 7: a(f"s_add_u32 {s(sT+3)}, {s(sT+3)}, 8192")
    gather()
    g_loads(a)
    fst(a, 16)
    a(f"s_lshr_b32 {s(sT+4)}, {s(sTG)}, 1")
    a(f"s_lshl_b32 {s(sT+4)}, {s(sT+4)}, 10")
    a(f"s_and_b32 {s(sT+5)}, {s(sTG)}, 1")
    a(f"s_lshl_b32 {s(sT+5)}, {s(sT+5)}, 3")
    a(f"s_add_u32 {s(sT+4)}, {s(sT+4)}, {s(sT+5)}")
    a(f"v_add_u32 v3, {s(sT+4)}, v2")
    a(f"v_and_b32 {v(vFA)}, 7, {L}")
    a(f"s_lshl_b32 {s(sT+8)}, {s(sKQ)}, 6")
    a(f"s_add_u32 {s(sT+8)}, {s(sT+8)}, {s(sMI)}")
    a(f"v_lshl_add_u32 {v(vFA)}, {v(vFA)}, 3, {s(sT+8)}")
    a(f"v_mov_b32 {v(vFT)}, 2")
    a(f"s_mov_b32 {s(sT+9)}, 0x100000")
    a("s_setprio 3")
    a("s_waitcnt vmcnt(16)")
    fst(a, 17)
    a("L_chk:")
    ps = [piece[(m, i)] for m in range(8) for i in range(3)]
    a(f"v_max3_u32 v10, {v(ps[0])}, {v(ps[1])}, {v(ps[2])}")
    a(f"v_max3_u32 v11, {v(ps[3])}, {v(ps[4])}, {v(ps[5])}")
    for n in range(6, 24, 4):
        a(f"v_max3_u32 v10, v10, {v(ps[n])}, {v(ps[n+1])}")
        if n + 2 < 24: a(f"v_max3_u32 v11, v11, {v(ps[n+2])}, {v(ps[n+3])}")
    a("v_max_u32 v10, v10, v11")
    a("v_cmp_eq_u32 vcc, -1, v10")
    a("s_cbranch_vccz L_valid")
    a(f"s_sub_u32 {s(sT+9)}, {s(sT+9)}, 1")
    a("s_cbranch_scc1 L_valid")
    gather()
    a("s_waitcnt vmcnt(0)")
    a("s_branch L_chk")
    a("L_valid:")
    for step in (4, 2, 1):
        for m in range(step):
            for i in range(3):
                for h in range(2):
                    a(f"v_pk_add_f32 {v(piece[(m,i)]+2*h,2)}, {v(piece[(m,i)]+2*h,2)}, {v(piece[(m+step,i)]+2*h,2)}")
    for i in range(3):
        for h in range(2):
            a(f"v_cvt_pk_bf16_f32 {v(48 + 2*i + h)}, {v(piece[(0,i)]+2*h)}, {v(piece[(0,i)]+2*h+1)}")
    for i in range(3):
        a(f"ds_write_b64 v3, {v(48+2*i,2)} offset:{E_KVF + 2*i*1024}")
    a("s_setprio 0")
    a("s_waitcnt vmcnt(0) lgkmcnt(0)")
    fst(a, 18)
    a("s_barrier")
    flag_store(a, 4, 2, "L_f2")
    a(f"s_cmp_eq_u32 {s(sWAVE)}, 5")
    a("s_cbranch_scc0 L_p2_ok")
    flag_load(a)
    a("s_waitcnt vmcnt(0)")
    flag_spin(a, "L_p2")
    fst(a, 19)

def a2_loads(st):
    u = st % 8
    return [[f"buffer_load_dwordx4 {v(A2R + 8*u, 4)}, v2, {s(srdWS,4)}, {s(sAOFF)} offen sc1"],
            [f"buffer_load_dwordx4 {v(A2R + 8*u + 4, 4)}, v2, {s(srdWS,4)}, {s(sAOFF)} offen offset:1024 sc1",
             f"s_add_u32 {s(sAOFF)}, {s(sAOFF)}, 8192"]]

def w2_reads(st):
    return [f"ds_read_b64_tr_b16 {v(W2F + 32*(st&1) + 4*i + 2*t, 2)}, {v(vWR[i])} offset:{(st%8)*8192 + 4096*t}" for i in range(8) for t in range(2)]

def phase2(a):
    L = v(vLANE)
    a("s_barrier")
    fst(a, 21)
    a(f"s_lshl_b32 {s(sT)}, {s(sMI)}, 1")
    a(f"s_add_u32 {s(sT)}, {s(sT)}, {s(sHF)}")
    a(f"s_mul_i32 {s(sABASE)}, {s(sT)}, {ACAT_TB}")
    a(f"s_lshl_b32 {s(sT)}, {s(sTG)}, 11")
    a(f"s_add_u32 {s(sABASE)}, {s(sABASE)}, {s(sT)}")
    a(f"s_mul_i32 {s(sAOFF)}, {s(sKQ)}, {24*8192}")
    a(f"s_add_u32 {s(sAOFF)}, {s(sAOFF)}, {32*8192}")
    a(f"s_add_u32 {s(sAOFF)}, {s(sAOFF)}, {s(sABASE)}")
    for st in range(D2): emit(a, a2_loads(st))
    a(f"s_cmp_eq_u32 {s(sHF)}, 0")
    a("s_cbranch_scc0 L2_noo")
    for tt in range(4):
        a(f"buffer_store_dwordx4 {v(ACC + 4*tt,4)}, v2, {s(srdWS,4)}, {s(sKS)} offen offset:{tt*1024} sc1")
    a("L2_noo:")
    a(f"v_lshrrev_b32 v4, 4, {L}")
    a("v_lshlrev_b32 v5, 10, v4")
    a(f"v_bfe_u32 v6, {L}, 2, 2")
    a("v_lshl_add_u32 v5, v6, 8, v5")
    a(f"v_and_b32 v6, 3, {L}")
    a("v_lshl_add_u32 v5, v6, 3, v5")
    a(f"v_add_u32 v5, {W2RING}, v5")
    a(f"v_bfe_u32 v6, {L}, 2, 3")
    a(f"s_lshl_b32 {s(sT)}, {s(sKQ)}, 1")
    for i in range(8):
        a(f"s_add_u32 {s(sT+1)}, {s(sT)}, {i}")
        a(f"s_and_b32 {s(sT+1)}, {s(sT+1)}, 7")
        a(f"v_xor_b32 v7, {s(sT+1)}, v6")
        a(f"v_lshl_add_u32 {v(vWR[i])}, v7, 5, v5")
    for x in w2_reads(0): a(x)
    a("v_mov_b32 v8, 0")
    a("v_mov_b32 v9, 0")
    for i in range(32):
        a(f"v_dot2_f32_bf16 {v(8 + (i&1))}, {v(GDAT+i)}, {v(GDAT+32+i)}, {v(8 + (i&1))}")
    a("v_add_f32 v8, v8, v9")
    for sh in (1, 2, 4, 8):
        a(f"v_add_f32_dpp v8, v8, v8 row_ror:{sh} row_mask:0xf bank_mask:0xf")
    a(f"s_mov_b32 {s(sT+10)}, 0x42700000")
    a(f"v_med3_f32 v8, v8, {s(sT+10)}, -{s(sT+10)}")
    a(f"v_mul_f32 v8, {s(sNC)}, v8")
    a("v_exp_f32 v8, v8")
    a("v_add_f32 v10, 1.0, v8")
    a("v_mov_b32 v9, v8")
    a("v_rcp_f32 v10, v10")
    a("v_mov_b32 v11, v10")
    a(f"s_lshl_b32 {s(sT+4)}, {s(sKQ)}, 15")
    a(f"s_lshl_b32 {s(sT+5)}, {s(sMI)}, 12")
    a(f"s_add_u32 {s(sT+4)}, {s(sT+4)}, {s(sT+5)}")
    a(f"s_add_u32 {s(sKS)}, {s(sT+4)}, {G_OFF}")
    a(f"s_lshl_b32 {s(sT+4)}, {s(sNB)}, 9")
    a(f"s_lshl_b32 {s(sT+5)}, {s(sWAVE)}, 6")
    a(f"s_add_u32 {s(sT+4)}, {s(sT+4)}, {s(sT+5)}")
    a(f"s_add_u32 {s(sT+4)}, {s(sT+4)}, {s(sKS)}")
    a("v_lshlrev_b32 v4, 4, v4")
    a("v_cmp_eq_u32 vcc, 0, v15")
    a(f"s_lshl_b32 {s(sT+5)}, {s(sWAVE)}, 9")
    a(f"s_add_u32 {s(sKS)}, {s(sKS)}, {s(sT+5)}")
    a("s_mov_b64 exec, vcc")
    a(f"buffer_store_dwordx4 v[8:11], v4, {s(srdWS,4)}, {s(sT+4)} offen sc1")
    a("s_mov_b64 exec, -1")
    for i in range(0, 64, 2): a(f"v_pk_mov_b32 {v(ACC2 + i, 2)}, 0, 0")
    a(f"v_and_b32 v4, 3, {L}")
    a(f"s_lshl_b32 {s(sT)}, {s(sNB)}, 3")
    a(f"s_add_u32 {s(sT)}, {s(sT)}, {s(sMI)}")
    a(f"v_lshl_add_u32 v4, v4, 6, {s(sT)}")
    a(f"v_and_b32 v5, 7, {L}")
    a(f"s_lshl_b32 {s(sT)}, {s(sKQ)}, 6")
    a(f"s_add_u32 {s(sT)}, {s(sT)}, {s(sMI)}")
    a(f"v_lshl_add_u32 v5, v5, 3, {s(sT)}")
    a(f"v_cmp_gt_u32 vcc, 8, {L}")
    a(f"v_cndmask_b32 {v(vFA)}, v4, v5, vcc")
    a(f"v_cndmask_b32 {v(vFT)}, 1, 3, vcc")
    a(f"s_mov_b32 {s(sIT)}, 0")
    a("s_waitcnt vmcnt(9)")
    fst(a, 22); fst(a, 40, cyc=True)
    a(".p2align 6")
    a("L2_loop:")
    for u in range(8):
        def when(it, lab):
            a(f"s_cmp_eq_u32 {s(sIT)}, {it}")
            a(f"s_cbranch_scc0 {lab}")
        if u == 2:
            when(2, "L2_c2")
            a(f"s_mul_i32 {s(sRA)}, {s(sKQ)}, {896*2048}")
            a(f"s_mul_i32 {s(sT)}, {s(sHF)}, {112*2048}")
            a(f"s_add_u32 {s(sRA)}, {s(sRA)}, {s(sT)}")
            a(f"s_add_u32 {s(sRA)}, {s(sRA)}, {s(sTH16)}")
            a(f"s_add_u32 {s(sRA)}, {s(sRA)}, {96*2048}")
            a(f"s_mov_b32 {s(sSTEP)}, {224*2048}")
            a(f"s_mov_b32 {s(sPINC)}, 0")
            a(f"s_lshl_b32 {s(sAOFF)}, {s(sKQ)}, 15")
            a(f"s_add_u32 {s(sAOFF)}, {s(sAOFF)}, {128*8192}")
            a(f"s_add_u32 {s(sAOFF)}, {s(sAOFF)}, {s(sABASE)}")
            a("L2_c2:")
        if u == 4:
            a(f"s_cmp_eq_u32 {s(sWAVE)}, 5")
            a("s_cbranch_scc0 L2_c4b")
            when(1, "L2_c4a")
            flag_load(a)
            a("L2_c4a:")
            when(2, "L2_c4b")
            flag_spin(a, "L2_p3")
            a("L2_c4b:")
        if u % 2 == 0:
            a(f"s_waitcnt vmcnt({2 + 3*(D2-3)}) lgkmcnt(0)")
            a("s_barrier")
        else:
            a("s_waitcnt lgkmcnt(0)")
        if u == 0:
            when(1, "L2_c0")
            flag_store(a, 4, 3, "L2_c0")
        if u == 4:
            when(3, "L2_c4c")
            for n in range(0, 64, 2):
                a(f"v_pk_mul_f32 {v(ACC2+n,2)}, {v(ACC2+n,2)}, {v(vGP + 4*(n//32),2)}")
            a("s_nop 1")
            a("L2_c4c:")
        if u == 6:
            when(2, "L2_c6a")
            a(f"s_lshl_b32 {s(sRA)}, {s(sKQ)}, 19")
            a(f"s_lshl_b32 {s(sT)}, {s(sHF)}, 15")
            a(f"s_add_u32 {s(sRA)}, {s(sRA)}, {s(sT)}")
            a(f"s_add_u32 {s(sRA)}, {s(sRA)}, {s(sTH16)}")
            a(f"s_mov_b32 {s(sSTEP)}, 65536")
            a(f"s_mov_b64 {s(srdW2,2)}, {s(sWO,2)}")
            a(f"s_mov_b32 {s(srdW2+2)}, {1024*2048}")
            a(f"s_lshl_b32 {s(sAOFF)}, {s(sKQ)}, 16")
            a(f"s_add_u32 {s(sAOFF)}, {s(sAOFF)}, {s(sABASE)}")
            for tt in range(2):
                a(f"buffer_load_dwordx4 {v(vGP+4*tt,4)}, v15, {s(srdWS,4)}, {s(sKS)} offen offset:{256*tt} sc1")
            a("L2_c6a:")
            a(f"s_cmp_eq_u32 {s(sIT)}, 3")
            a(f"s_cselect_b32 {s(srdW2+2)}, 0, {s(srdW2+2)}")
            a(f"s_cselect_b32 {s(sAOFF)}, 0x40000000, {s(sAOFF)}")
        rd = [[x] for x in w2_reads(u + 1)]
        ld = [w2_load(u + D2)] + a2_loads(u + D2)
        seq = rd[0:4] + [ld[0]] + rd[4:8] + [ld[1]] + rd[8:12] + [ld[2]] + rd[12:16]
        done = n = 0
        for i in range(8):
            for k in range(2):
                tt = k if i % 2 == 0 else 1 - k
                c = v(ACC2 + 32*tt + 4*i, 4)
                a(f"v_mfma_f32_16x16x32_bf16 {c}, {v(W2F + 32*(u&1) + 4*i, 4)}, {v(A2R + 8*u + 4*tt, 4)}, {c}")
                n += 1
                want = min(len(seq), (n*len(seq) + 12) // 13)
                while done < want:
                    for t_ in seq[done]: a(t_)
                    done += 1
        if u == 3:
            a(f"s_cmp_eq_u32 {s(sIT)}, 4")
            a("s_cbranch_scc1 L2_done")
    a(f"s_add_u32 {s(sIT)}, {s(sIT)}, 1")
    a("s_branch L2_loop")
    a("L2_done:")
    fst(a, 23); fst(a, 41, cyc=True)
    PK = 80
    IN = 112
    r = Rec()
    C = lambda tt, i: ACC2 + 32*tt + 4*i
    for p in (1, 2, 3, 0):
        for tt in range(2):
            for i in (2*p, 2*p+1):
                for h in range(2):
                    r(f"v_pk_mul_f32 {v(C(tt,i)+2*h,2)}, {v(C(tt,i)+2*h,2)}, {v(vGP+4*tt+2,2)}")
                    if p: r(f"v_cvt_pk_bf16_f32 {v(PK + 8*(p-1) + 4*tt + 2*(i&1) + h)}, {v(C(tt,i)+2*h)}, {v(C(tt,i)+2*h+1)}")
            if p: r(f"buffer_store_dwordx4 {v(PK + 8*(p-1) + 4*tt, 4)}, v2, {s(srdWS,4)}, {s(sXCL)} offen offset:{tt*1024} sc1")
        if p in (1, 2): r(f"s_add_u32 {s(sXCL)}, {s(sXCL)}, 16384")
    a("s_nop 7")
    emit_sched(a, r)
    a(f"s_mul_i32 {s(sT)}, {s(sKQ)}, 49152")
    a(f"s_sub_u32 {s(sT+1)}, {s(sXCL)}, {s(sT)}")
    a(f"s_sub_u32 {s(sT+1)}, {s(sT+1)}, 32768")
    for p in range(1, 4):
        a(f"s_sub_u32 {s(sT+2)}, {s(sKQ)}, {p}")
        a(f"s_and_b32 {s(sT+2)}, {s(sT+2)}, 3")
        a(f"s_mul_i32 {s(sT+2)}, {s(sT+2)}, 49152")
        a(f"s_add_u32 {s(sT+2)}, {s(sT+2)}, {(p-1)*16384}")
        a(f"s_add_u32 {s(sT+2+p)}, {s(sT+1)}, {s(sT+2)}")
    a(f"v_and_b32 v4, 15, {L}")
    a("v_lshlrev_b32 v4, 11, v4")
    a(f"v_bfe_u32 v5, {L}, 4, 1")
    a("v_lshl_add_u32 v4, v5, 5, v4")
    a(f"v_lshrrev_b32 v5, 5, {L}")
    a("v_lshl_add_u32 v4, v5, 4, v4")
    a(f"s_lshl_b32 {s(sT+6)}, {s(sMI)}, 19")
    a(f"s_lshl_b32 {s(sT+7)}, {s(sWAVE)}, 16")
    a(f"s_add_u32 {s(sT+6)}, {s(sT+6)}, {s(sT+7)}")
    a(f"s_lshl_b32 {s(sT+7)}, {s(sNB)}, 8")
    a(f"s_add_u32 {s(sT+6)}, {s(sT+6)}, {s(sT+7)}")
    a(f"s_lshl_b32 {s(sT+7)}, {s(sKQ)}, 6")
    a(f"s_add_u32 {s(sT+6)}, {s(sT+6)}, {s(sT+7)}")
    a(f"s_add_u32 {s(sT+7)}, {s(sT+6)}, 32768")
    a(f"s_mov_b32 {s(sT+9)}, 0x100000")
    fst(a, 24)
    a("L2_rx:")
    for p in range(1, 4):
        for tt in range(2):
            a(f"buffer_load_dwordx4 {v(IN + 8*(p-1) + 4*tt, 4)}, v2, {s(srdWS,4)}, {s(sT+2+p)} offen offset:{tt*1024} sc1")
    a("s_waitcnt vmcnt(0)")
    a(f"v_max3_u32 v5, {v(IN)}, {v(IN+4)}, {v(IN+8)}")
    a(f"v_max3_u32 v6, {v(IN+12)}, {v(IN+16)}, {v(IN+20)}")
    a("v_max_u32 v5, v5, v6")
    a("v_cmp_eq_u32 vcc, -1, v5")
    a("s_cbranch_vccz L2_rxok")
    a(f"s_sub_u32 {s(sT+9)}, {s(sT+9)}, 1")
    a("s_cbranch_scc0 L2_rx")
    a("L2_rxok:")
    fst(a, 25)
    r = Rec()
    UN = 144
    for p in range(3):
        for n in range(8):
            d = UN + 2*n
            r(f"v_lshlrev_b32 {v(d)}, 16, {v(IN + 8*p + n)}")
            r(f"v_and_b32 {v(d+1)}, 0xffff0000, {v(IN + 8*p + n)}")
            tt, i, h = n >> 2, (n >> 1) & 1, n & 1
            r(f"v_pk_add_f32 {v(C(tt,i)+2*h,2)}, {v(C(tt,i)+2*h,2)}, {v(d,2)}")
    for tt in range(2):
        for i in range(2):
            for h in range(2):
                r(f"v_cvt_pk_bf16_f32 {v(PK + 4*tt + 2*i + h)}, {v(C(tt,i)+2*h)}, {v(C(tt,i)+2*h+1)}")
        r(f"v_permlane16_swap_b32 {v(PK+4*tt)}, {v(PK+4*tt+2)}")
        r(f"v_permlane16_swap_b32 {v(PK+4*tt+1)}, {v(PK+4*tt+3)}")
        r(f"buffer_store_dwordx4 {v(PK+4*tt,4)}, v4, {s(srdO,4)}, {s(sT+6+tt)} offen")
    emit_sched(a, r)

def build(opt):
    OPT.clear(); OPT.update(opt)
    a = Asm()
    a.L.append(f"; @launch grid=(256,1,1) block=(512,1,1) lds={LDS_BYTES}")
    a.L.append('.amdgcn_target "amdgcn-amd-amdhsa--gfx950"')
    a.L.append(".text")
    kernel_header(a, KN)
    fst(a, 0)
    setup(a)
    a(f"s_cmp_eq_u32 {s(sHF)}, 0")
    a("s_cbranch_scc0 L_half1")
    for hf in range(2):
        if hf == 1: a("L_half1:")
        prologue(a, hf)
        fst(a, 6); fst(a, 38, cyc=True)
        main_loop(a, hf)
        fst(a, 10); fst(a, 39, cyc=True)
        a("s_nop 7")
        (epilogue0, epilogue1)[hf](a)
        if hf == 0: a("s_branch L_phase2")
    a("L_phase2:")
    phase2(a)
    if OPT.get("fine"):
        a("s_waitcnt vmcnt(0)")
        fst(a, 26)
        a(f"v_lshlrev_b32 v14, 2, {v(vLANE)}")
        a(f"s_lshl_b32 {s(sT)}, s2, 3")
        a(f"s_add_u32 {s(sT)}, {s(sT)}, {s(sWAVE)}")
        a(f"s_lshl_b32 {s(sT)}, {s(sT)}, 8")
        a(f"s_add_u32 {s(sT)}, {s(sT)}, 0xE000000")
        a(f"buffer_store_dword v255, v14, {s(srdWS,4)}, {s(sT)} offen")
    a("L_end:")
    a("s_endpgm")
    kernel_desc(a, KN, 256, 102, 256)
    return a.text()

if __name__ == "__main__":
    opt = dict(x.split("=") if "=" in x else (x, 1) for x in sys.argv[2:])
    open(sys.argv[1], "w").write(build(opt))
```
